```python
import torch

def _softmax(x, axis=-1):
    return torch.softmax(x, dim=axis)
def _gelu(x):
    return torch.nn.functional.gelu(x, approximate="tanh")
def _silu(x):
    return torch.nn.functional.silu(x)
def _sigmoid(x):
    return torch.sigmoid(x)
def _layernorm(x, axis=-1, eps=1e-5):
    m = x.mean(dim=axis, keepdim=True)
    v = x.var(dim=axis, keepdim=True, unbiased=False)
    return (x - m) / torch.sqrt(v + eps)
def _scatter_add(tgt, idx, src, axis=0):
    return tgt.clone().index_add_(axis, idx, src)
def _segment_sum(src, seg, n):
    out = torch.zeros((n,) + src.shape[1:], dtype=src.dtype)
    return out.index_add_(0, seg, src)
def _pad(x, pw):
    flat = tuple(v for pair in reversed(pw) for v in pair)
    return torch.nn.functional.pad(x, flat)

kernel_name = 'standalone__mha_block_cached__near_ridge'

def setup_inputs():

    _w = (lambda a: (lambda t: t.to(torch.bfloat16) if t.is_floating_point() else t)(torch.as_tensor(a)))
    B, Sq, D = 8, 112, 512
    H, Sk, Dh = 32, 1024, 128
    return {
        "x": _w((lambda *s: torch.randn(*s, dtype=torch.bfloat16) * 0.8)(B, Sq, D)),
        "k_cache": _w((lambda *s: torch.randn(*s, dtype=torch.bfloat16) * 0.8)(B, H, Sk, Dh)),
        "v_cache": _w((lambda *s: torch.randn(*s, dtype=torch.bfloat16) * 0.05)(B, H, Sk, Dh)),
        "wq": _w((lambda *s: torch.randn(*s, dtype=torch.bfloat16) * 0.8)(D, H * Dh) * (D ** -0.5)),
        "wo": _w((lambda *s: torch.randn(*s, dtype=torch.bfloat16) * 0.05)(H * Dh, D) * ((H * Dh) ** -0.5)),
    }

def reference(x, k_cache, v_cache, wq, wo):
    B, Sq, D = x.shape
    H, Dh = 32, 128
    q = (lambda x, *d: x.permute(*d))((x @ wq).reshape(B, Sq, H, Dh), 0, 2, 1, 3)
    scores = torch.einsum("bhqd,bhkd->bhqk", q, k_cache) * (Dh ** -0.5)
    p = _softmax(scores, axis=-1)
    o = torch.einsum("bhqk,bhkd->bhqd", p, v_cache)
    return (lambda x, *d: x.permute(*d))(o, 0, 2, 1, 3).reshape(B, Sq, H * Dh) @ wo
```

```python
KN = "standalone__mha_block_cached__near_ridge_kernel"
class Asm:
    def __init__(self):
        self.l = []
    def __call__(self, s=""):
        for x in s.split("\n"):
            x = x.strip()
            if x: self.l.append(("    " + x) if not x.endswith(":") else x)
    def text(self):
        return "\n".join(self.l) + "\n"

HEADER = """; Kernarg layout (64 bytes, ptrs only, base s[0:1]):
"""
def kernel_file(launches, bodies, extra_comment=""):
    s = HEADER + extra_comment
    if len(launches) == 1 and launches[0][0] == KN:
        n, g, b, lds = launches[0]
        s += f"; @launch grid=({g},1,1) block=({b},1,1) lds={lds}\n"
    else:
        for n, g, b, lds in launches:
            s += f"; @launch kernel={n} grid=({g},1,1) block=({b},1,1) lds={lds}\n"
    s += '.amdgcn_target "amdgcn-amd-amdhsa--gfx950"\n.text\n'
    for n, (t, vg, acc, sg) in bodies.items():
        s += f".globl {n}\n.p2align 8\n.type {n},@function\n{n}:\n{t}"
    s += '.section .rodata,"a"\n'
    for n, (t, vg, acc, sg) in bodies.items():
        s += f""".p2align 6
.amdhsa_kernel {n}
  .amdhsa_next_free_vgpr {vg}
  .amdhsa_next_free_sgpr {sg}
  .amdhsa_accum_offset {acc}
  .amdhsa_group_segment_fixed_size 0
  .amdhsa_kernarg_size 64
  .amdhsa_user_sgpr_count 2
  .amdhsa_user_sgpr_kernarg_segment_ptr 1
  .amdhsa_system_sgpr_workgroup_id_x 1
  .amdhsa_float_denorm_mode_32 3
.end_amdhsa_kernel
"""
    return s
```

```python
import re
TRANS = ("v_exp_f32", "v_log_f32", "v_rcp_f32", "v_rsq_f32", "v_sqrt_f32")
def regs(op):
    op = op.strip()
    neg = op.lstrip("-")
    m = re.fullmatch(r"([vas])\[(\d+):(\d+)\]", neg)
    if m: return [(m.group(1), i) for i in range(int(m.group(2)), int(m.group(3)) + 1)]
    m = re.fullmatch(r"([vas])(\d+)", neg)
    if m: return [(m.group(1), int(m.group(2)))]
    if neg in ("vcc", "vcc_lo", "vcc_hi"): return [("s", "vcc")]
    if neg == "m0": return [("s", "m0")]
    if neg in ("exec", "exec_lo", "exec_hi"): return [("s", "exec")]
    return []
def parse(line):
    line = line.split(";")[0].strip()
    if not line or line.endswith(":"): return None
    p = line.split(None, 1)
    mn = p[0]
    ops = []
    if len(p) > 1:
        ops = [o.strip() for o in p[1].split(",")]
        if ops:
            last = ops[-1].split()
            ops[-1] = last[0] if last else ""
    mods = line
    d = dict(mn=mn, ops=ops, text=line, w=[], r=[], kind="other")
    R = lambda i: regs(ops[i]) if i < len(ops) else []
    if mn.startswith("v_mfma"):
        d.update(kind="mfma", w=R(0), a=R(1), b=R(2), c=R(3)); d["r"] = d["a"] + d["b"] + d["c"]
    elif mn.startswith("v_cmp"):
        d.update(kind="valu", w=R(0), r=R(1) + R(2))
    elif mn.startswith("v_permlane32_swap"):
        d.update(kind="valu", w=R(0) + R(1), r=R(0) + R(1))
    elif mn.startswith("v_readfirstlane") or mn.startswith("v_readlane"):
        d.update(kind="valu", w=R(0), r=R(1))
    elif mn.startswith("v_"):
        r = sum((R(i) for i in range(1, len(ops))), [])
        if mn.startswith("v_fmac") or mn.startswith("v_dot2c"): r += R(0)
        if mn.startswith("v_cndmask") and len(ops) == 3: r += [("s", "vcc")]
        d.update(kind="valu", w=R(0), r=r)
    elif mn.startswith("ds_read"):
        d.update(kind="ds", w=R(0), r=R(1))
    elif mn.startswith("ds_write"):
        d.update(kind="ds", r=R(0) + R(1))
    elif mn.startswith("buffer_load") or mn.startswith("global_load"):
        if " lds" in mods:
            d.update(kind="vmem", r=R(0) + R(1) + R(2) + [("s", "m0")], lds=True)
        else:
            d.update(kind="vmem", w=R(0), r=R(1) + R(2) + R(3))
    elif mn.startswith("buffer_store") or mn.startswith("buffer_atomic"):
        d.update(kind="vmem", r=R(0) + R(1) + R(2) + R(3), data=R(0), store=True)
    elif mn.startswith("s_load") or mn.startswith("s_memrealtime") or mn.startswith("s_memtime"):
        d.update(kind="smem", w=R(0), r=R(1))
    elif mn.startswith("s_cmp") or mn.startswith("s_cbranch") or mn in ("s_barrier", "s_waitcnt", "s_nop", "s_branch", "s_endpgm", "s_sleep", "s_setprio"):
        d.update(kind="salu", r=sum((R(i) for i in range(len(ops))), []))
    elif mn.startswith("s_"):
        d.update(kind="salu", w=R(0), r=sum((R(i) for i in range(1, len(ops))), []))
    return d
def ws(d):
    if d["mn"] == "s_nop": return int(d["ops"][0]) + 1
    return 1
def check(lines, name=""):
    ins = [x for x in (parse(l) for l in lines) if x]
    errs = []
    pos = [0]
    for d in ins: pos.append(pos[-1] + ws(d))
    def dist(i, j): return pos[j] - pos[i + 1]
    W = 40
    for j, c in enumerate(ins):
        for i in range(max(0, j - W), j):
            p = ins[i]; n = dist(i, j)
            if n >= 20: continue
            pw = set(p["w"]); need = 0; why = ""
            vw = {x for x in pw if x[0] in "va"}; sw = {x for x in pw if x[0] == "s"}
            if p["kind"] == "mfma":
                if c["kind"] == "mfma":
                    if pw & set(c["a"] + c["b"]): need, why = 12, "mfma D->A/B"
                    elif pw & set(c["c"]) and p["w"] != c["c"]: need, why = 10, "mfma D->C overlap"
                    elif pw & set(c["w"]) and not (p["w"] == c["c"]): need, why = 12, "mfma D WAW"
                elif c["kind"] in ("valu", "ds", "vmem") and pw & set(c["r"] + c["w"]): need, why = 12, "mfma D->valu/mem"
                if c["kind"] == "valu" and set(p["c"]) & set(c["w"]) and need < 7: need, why = 7, "mfma C WAR"
            if p["kind"] == "valu":
                if c["kind"] == "mfma" and vw & set(c["r"]): need, why = 2, "valu->mfma"
                if c["kind"] == "valu":
                    if p["mn"].startswith(TRANS) and not c["mn"].startswith(TRANS) and vw & set(c["r"]): need, why = max(need, 1), "trans->valu"
                    if c["mn"].startswith("v_permlane") and vw & set(c["r"]): need, why = 2, "valu->permlane"
                    if c["mn"].startswith(("v_readfirstlane", "v_readlane")) and vw & set(c["r"]): need, why = max(need, 1), "valu->readlane"
                    if sw & set(c["r"]): need, why = 2, "valu sgpr->valu"
                if c["kind"] == "vmem" and sw & set(c["r"]): need, why = 5, "valu sgpr->vmem"
            if p["kind"] == "salu" and ("s", "m0") in pw and c.get("lds"): need, why = 1, "m0->lds dma"
            if p.get("store") and len(p["data"]) >= 3 and c["kind"] == "valu" and set(p["data"]) & set(c["w"]): need, why = 2, "store data WAR"
            if n < need: errs.append(f"{name}: {why}: need {need} have {n}: [{p['text']}] -> [{c['text']}]")
    lq = []; vq = []
    for c in ins:
        if c["mn"] == "s_waitcnt":
            m = re.search(r"lgkmcnt\((\d+)\)", c["text"])
            if m:
                n = int(m.group(1))
                if any(k == "smem" for k, _ in lq):
                    if n == 0: lq = []
                    else:
                        ds = [x for x in lq if x[0] == "ds"]; sm = [x for x in lq if x[0] == "smem"]
                        lq = sm + ds[max(0, len(ds) - n):]
                else: lq = lq[max(0, len(lq) - n):]
            m = re.search(r"vmcnt\((\d+)\)", c["text"])
            if m:
                n = int(m.group(1)); vq = vq[max(0, len(vq) - n):]
            continue
        use = set(c["r"]) | set(c["w"])
        for k, q in (("lgkm", lq), ("vm", vq)):
            for _, w in q:
                if use & set(w): errs.append(f"{name}: {k} pending dest used: [{c['text']}]")
        if c["kind"] == "ds": lq.append(("ds", c["w"]))
        if c["kind"] == "smem": lq.append(("smem", c["w"]))
        if c["kind"] == "vmem": vq.append(("vm", c["w"]))
        if len([x for x in lq if x[0] == "ds"]) > 15 and c["kind"] == "ds": pass
    return errs
```

```python
import sys, math, struct
from asmlib import *
import hazard

STAMP_OFF = 240 << 20
SLOT = 16384
PB = 8 << 20
F1 = 16 << 20
F2 = F1 + 16384
WS_SIZE = F2 + 32768
SCALE = math.log2(math.e) / math.sqrt(128.0)
def f2u(x): return struct.unpack("<I", struct.pack("<f", x))[0]

sX, sWQ, sK, sV, sWO, sWS, sOUT, sDBG = 20, 24, 28, 32, 36, 40, 44, 48
sW, sB, sH, sJ, sG, sW4K, sCC, sT = 52, 53, 54, 55, 56, 57, 58, 59
sT0, sT1 = 60, 61
sSC = 62
sKSO, sVSO = 64, 65
sN0, sN1, sN2 = 66, 67, 68
sD = 69
sM0, sM1, sM2 = 70, 71, 3
sAT = 72
sOB = 73
sPBs = 74
sSPIN = 75
STAMP0 = 76
vKR, vVR, vKD, vVD, vXD, vWD, vWR, vXR = 8, 16, 20, 24, 28, 32, 36, 40
vOR = 44; vL0, vL1, vMX0, vMX1 = 46, 47, 48, 49
vCNT, vF1P, vF2P, vL16, vOUTA, vFOWN = 50, 51, 52, 53, 54, 55
vWRB, vXRB = 56, 60
vO, vSA, vSB, vCI, vP, vQ, vY = 64, 128, 144, 160, 176, 192, 224
aK, aV = 0, 32
def vr(b, n): return f"v[{b}:{b+n-1}]"
def ar(b, n): return f"a[{b}:{b+n-1}]"
def sr(b, n=4): return f"s[{b}:{b+n-1}]"
MF = "v_mfma_f32_32x32x16_bf16"

class Gen:
    def __init__(self, stamps=False, kvflag="nt", dump=None, T=8.0, prefetch_code=True, woflag=""):
        self.A = Asm(); self.stamps = stamps; self.kv = kvflag; self.dump = dump; self.T = T
        self.nst = 0; self.prefetch_code = prefetch_code; self.woflag = woflag
        self.segs = {}
    def stamp(self):
        if self.stamps:
            i = self.nst; self.nst += 1
            self.A(f"s_memrealtime s[{STAMP0+2*i}:{STAMP0+2*i+1}]")
    def mark(self): return len(self.A.l)
    def seg(self, name, a): self.segs[name] = self.A.l[a:]

    def prologue(self):
        A = self.A
        self.stamp()
        A(f"""
        s_cmp_ge_u32 s2, 256
        s_cbranch_scc1 L_end
        s_load_dwordx16 s[4:19], s[0:1], 0
        v_lshrrev_b32 v1, 6, v0
        v_and_b32 v0, 63, v0
        s_and_b32 s{sT0}, s2, 7
        v_readfirstlane_b32 s{sW}, v1
        s_lshr_b32 s{sG}, s{sT0}, 1
        s_and_b32 s{sT0}, s{sT0}, 1
        s_lshr_b32 s{sAT}, s2, 3
        s_and_b32 s{sT1}, s{sAT}, 3
        s_lshr_b32 s{sJ}, s{sAT}, 2
        s_lshl_b32 s{sB}, s{sT0}, 2
        s_add_u32 s{sB}, s{sB}, s{sT1}
        s_lshl_b32 s{sH}, s{sG}, 3
        s_add_u32 s{sH}, s{sH}, s{sJ}
        s_lshl_b32 s{sT1}, s{sT1}, 1
        s_add_u32 s{sCC}, s{sJ}, s{sT1}
        s_and_b32 s{sCC}, s{sCC}, 7
        s_and_b32 s{sAT}, s{sAT}, 7
        s_lshl_b32 s{sW4K}, s{sW}, 12
        v_lshrrev_b32 v2, 4, v0
        v_and_b32 v3, 15, v0
        v_lshlrev_b32 v4, 2, v2
        v_xor_b32 v4, v4, v3
        v_lshlrev_b32 v4, 4, v4
        s_lshl_b32 s{sT0}, s{sW}, 4
        v_add_u32 v5, s{sT0}, v2
        v_lshl_add_u32 v{vWD}, v5, 13, v4
        v_lshl_add_u32 v{vVD}, v5, 8, v4
        """)
        for p in range(1, 4):
            A(f"v_add_u32 v{vWD+p}, {p*(4*8192-1024)}, v{vWD}")
        A(f"""
        v_lshrrev_b32 v6, 3, v0
        v_and_b32 v7, 7, v0
        s_lshl_b32 s{sT0}, s{sW}, 5
        v_add_u32 v5, s{sT0}, v6
        v_xor_b32 v1, v2, v7
        v_lshlrev_b32 v1, 4, v1
        v_lshl_add_u32 v{vXD}, v5, 10, v1
        v_xor_b32 v1, 64, v1
        v_lshl_add_u32 v{vXD+1}, v5, 10, v1
        s_cmp_eq_u32 s{sW}, 3
        s_cselect_b32 s{sT0}, 16384, 0
        s_sub_u32 s{sT0}, 14336, s{sT0}
        v_add_u32 v{vXD+1}, 7168, v{vXD+1}
        v_add_u32 v{vXD+2}, s{sT0}, v{vXD}
        v_add_u32 v{vXD+3}, s{sT0}, v{vXD+1}
        s_mul_i32 s{sT0}, s{sB}, 114688
        s_lshl_b32 s{sT1}, s{sH}, 8
        s_waitcnt lgkmcnt(0)
        s_add_u32 s{sX}, s4, s{sT0}
        s_addc_u32 s{sX+1}, s5, 0
        s_mov_b32 s{sX+2}, 114688
        s_mov_b32 s{sX+3}, 0x20000
        s_add_u32 s{sWQ}, s10, s{sT1}
        s_addc_u32 s{sWQ+1}, s11, 0
        s_sub_u32 s{sWQ+2}, 0x400000, s{sT1}
        s_mov_b32 s{sWQ+3}, 0x20000
        s_add_u32 s{sOUT}, s14, s{sT0}
        s_addc_u32 s{sOUT+1}, s15, 0
        s_mov_b32 s{sOUT+2}, 114688
        s_mov_b32 s{sOUT+3}, 0x20000
        """)
        A(f"""
        s_mov_b32 s{sN0}, {6*SLOT}
        s_mov_b32 s{sN1}, {8*SLOT}
        s_mov_b32 s{sN2}, {2*SLOT}
        s_mov_b32 s{sM0}, {7*SLOT}
        s_mov_b32 s{sM1}, {9*SLOT}
        s_mov_b32 s{sM2}, {5*SLOT}
        """)
        self.issue_xw(sN0, sM0)
        self.issue_xw(sN1, sM1)
        self.stamp()
        A(f"""
        s_lshl_b32 s{sT0}, s{sB}, 5
        s_add_u32 s{sT0}, s{sT0}, s{sH}
        s_lshl_b32 s{sT1}, s{sT0}, 18
        s_add_u32 s{sK}, s6, s{sT1}
        s_addc_u32 s{sK+1}, s7, 0
        s_mov_b32 s{sK+2}, 0x40000
        s_mov_b32 s{sK+3}, 0x20000
        s_add_u32 s{sV}, s8, s{sT1}
        s_addc_u32 s{sV+1}, s9, 0
        s_mov_b32 s{sV+2}, 0x40000
        s_mov_b32 s{sV+3}, 0x20000
        s_lshl_b32 s{sT0}, s{sG}, 20
        s_lshl_b32 s{sT1}, s{sJ}, 7
        s_add_u32 s{sT0}, s{sT0}, s{sT1}
        s_add_u32 s{sWO}, s12, s{sT0}
        s_addc_u32 s{sWO+1}, s13, 0
        s_sub_u32 s{sWO+2}, 0x400000, s{sT0}
        s_mov_b32 s{sWO+3}, 0x20000
        s_mov_b32 s{sWS}, s18
        s_mov_b32 s{sWS+1}, s19
        s_mov_b32 s{sWS+2}, {WS_SIZE}
        s_mov_b32 s{sWS+3}, 0x20000
        s_mov_b32 s{sDBG}, s16
        s_mov_b32 s{sDBG+1}, s17
        s_mov_b32 s{sDBG+2}, 256
        s_mov_b32 s{sDBG+3}, 0x20000
        s_mov_b32 s{sSC}, {f2u(SCALE):#x}
        s_mov_b32 s{sSC+1}, {f2u(SCALE):#x}
        """)
        A(f"""
        s_lshl_b32 s{sT0}, s{sB}, 2
        s_add_u32 s{sT0}, s{sT0}, s{sG}
        s_lshl_b32 s{sOB}, s{sT0}, 18
        s_lshl_b32 s{sT1}, s{sW}, 13
        s_add_u32 s{sOB}, s{sOB}, s{sT1}
        s_lshl_b32 s{sT0}, s{sT0}, 2
        s_add_u32 s{sT0}, s{sT0}, s{sW}
        s_lshl_b32 s{sT0}, s{sT0}, 7
        s_add_u32 s{sT0}, s{sT0}, {F1}
        v_and_b32 v1, 7, v0
        v_lshl_add_u32 v{vF1P}, v1, 2, s{sT0}
        s_lshl_b32 s{sT1}, s{sJ}, 2
        s_add_u32 s{sT0}, s{sT0}, s{sT1}
        v_mov_b32 v{vFOWN}, s{sT0}
        s_lshl_b32 s{sT0}, s{sB}, 3
        s_add_u32 s{sT0}, s{sT0}, s{sJ}
        s_lshl_b32 s{sT0}, s{sT0}, 2
        s_add_u32 s{sT0}, s{sT0}, s{sW}
        s_lshl_b32 s{sPBs}, s{sT0}, 15
        s_add_u32 s{sPBs}, s{sPBs}, {PB}
        s_lshl_b32 s{sT0}, s{sT0}, 7
        s_add_u32 s{sT0}, s{sT0}, {F2}
        v_and_b32 v1, 3, v0
        v_lshl_add_u32 v{vF2P}, v1, 2, s{sT0}
        s_lshl_b32 s{sT1}, s{sG}, 2
        s_add_u32 s{sT0}, s{sT0}, s{sT1}
        v_writelane_b32 v{vFOWN}, s{sT0}, 1
        v_mov_b32 v1, 0
        v_mov_b32 v{vCNT}, 0
        s_mov_b64 exec, 3
        buffer_store_dword v1, v{vFOWN}, {sr(sWS)}, 0 offen sc1
        s_mov_b64 exec, -1
        v_lshlrev_b32 v{vL16}, 4, v0
        """)
        if self.prefetch_code:
            A(f"""
            s_getpc_b64 s[{sT0}:{sT1}]
            v_lshlrev_b32 v1, 7, v0
            s_lshl_b32 s{sD}, s{sW}, 13
            v_add_u32 v1, s{sD}, v1
            s_mov_b32 s{sD}, CODE_END - L_pcref
            L_pcref:
            v_min_u32 v1, s{sD}, v1
            global_load_dword v{vMX0}, v1, s[{sT0}:{sT1}]
            """)
        A(f"""
        s_lshl_b32 s{sT0}, s{sW}, 4
        v_add_u32 v5, s{sT0}, v2
        """)
        for p in range(4):
            A(f"""
            v_add_u32 v4, {4*p}, v2
            v_xor_b32 v4, v4, v3
            v_lshlrev_b32 v4, 4, v4
            v_lshl_add_u32 v{vKD+p}, v5, 8, v4
            """)
        for p in range(1, 4): A(f"v_mov_b32 v{vVD+p}, v{vVD}")
        A(f"""
        v_and_b32 v1, 31, v0
        v_lshrrev_b32 v2, 5, v0
        v_bfe_u32 v3, v0, 2, 2
        v_and_b32 v4, 3, v0
        v_bfe_u32 v5, v0, 4, 1
        v_and_b32 v6, 15, v1
        v_xor_b32 v6, v6, v2
        v_lshlrev_b32 v6, 4, v6
        v_lshl_add_u32 v{vKR}, v1, 8, v6
        """)
        for s in range(1, 8): A(f"v_xor_b32 v{vKR+s}, {s*32}, v{vKR}")
        A(f"""
        v_bfe_u32 v6, v1, 1, 3
        v_xor_b32 v6, v6, v2
        v_lshlrev_b32 v6, 4, v6
        v_lshl_add_u32 v6, v1, 7, v6
        v_add_u32 v{vXRB}, s{sW4K}, v6
        """)
        for s in range(1, 4): A(f"v_xor_b32 v{vXRB+s}, {s*32}, v{vXRB}")
        A(f"""
        v_lshlrev_b32 v6, 6, v3
        v_lshl_add_u32 v6, v5, 5, v6
        v_lshl_add_u32 v7, v4, 3, v6
        v_lshl_add_u32 v7, v3, 8, v7
        v_lshl_add_u32 v7, v2, 10, v7
        v_add_u32 v{vVR}, {3*SLOT}, v7
        """)
        for db in range(1, 4): A(f"v_xor_b32 v{vVR+db}, {db*64}, v{vVR}")
        A(f"""
        v_and_b32 v7, 1, v4
        v_lshl_add_u32 v6, v7, 4, v6
        v_lshrrev_b32 v7, 1, v4
        v_lshl_add_u32 v6, v7, 3, v6
        v_lshl_add_u32 v6, v3, 8, v6
        v_lshl_add_u32 v{vWRB}, v2, 11, v6
        """)
        for db in range(1, 4): A(f"v_xor_b32 v{vWRB+db}, {db*64}, v{vWRB}")
        A(f"""
        v_xor_b32 v6, s{sG}, v5
        v_lshlrev_b32 v6, 5, v6
        v_lshrrev_b32 v7, 1, v3
        v_lshlrev_b32 v7, 6, v7
        v_xor_b32 v6, v6, v7
        v_lshl_add_u32 v6, v4, 3, v6
        v_lshl_add_u32 v6, v3, 7, v6
        v_lshl_add_u32 v6, v2, 9, v6
        v_add_u32 v{vOR}, {6*SLOT}, v6
        v_xor_b32 v{vOR+1}, 64, v{vOR}
        """)
        A(f"""
        s_lshl_b32 s{sT0}, s{sW}, 15
        s_lshl_b32 s{sT1}, s{sJ}, 7
        s_add_u32 s{sT0}, s{sT0}, s{sT1}
        s_lshl_b32 s{sT1}, s{sG}, 5
        s_add_u32 s{sT0}, s{sT0}, s{sT1}
        v_lshl_add_u32 v6, v1, 10, s{sT0}
        v_lshl_add_u32 v{vOUTA}, v2, 4, v6
        """)
        for i in range(64): A(f"v_mov_b32 v{vO+i}, 0")
        A(f"s_mov_b32 s{sT}, 0")

    def issue_xw(self, sx, sw):
        A = self.A
        A(f"""
        s_add_u32 m0, s{sx}, s{sW4K}
        s_lshl_b32 s{sT0}, s{sCC}, 7
        s_lshl_b32 s{sT1}, s{sCC}, 19
        """)
        for p in range(4): A(f"buffer_load_dwordx4 v{vXD+p}, {sr(sX)}, s{sT0} offen offset:{1024*p} lds")
        A(f"s_add_u32 m0, s{sw}, s{sW4K}\ns_add_u32 s{sCC}, s{sCC}, 1")
        for p in range(4): A(f"buffer_load_dwordx4 v{vWD+p}, {sr(sWQ)}, s{sT1} offen offset:{1024*p} lds")
        A(f"s_and_b32 s{sCC}, s{sCC}, 7")

    def dma_k(self): return [f"buffer_load_dwordx4 v{vKD+p}, {sr(sK)}, s{sKSO} offen offset:{1024*p} {self.kv} lds" for p in range(4)]
    def dma_v(self): return [f"buffer_load_dwordx4 v{vVD+p}, {sr(sV)}, s{sVSO} offen offset:{1024*p} {self.kv} lds" for p in range(4)]

    def qphase(self):
        A = self.A
        m = self.mark()
        A("L_q:")
        for i in range(4): A(f"v_add_u32 v{vWR+i}, s{sM0}, v{vWRB+i}")
        for i in range(4): A(f"v_add_u32 v{vXR+i}, s{sN0}, v{vXRB+i}")
        A("s_waitcnt vmcnt(8)\ns_barrier")
        def reads(s):
            r = [f"ds_read_b128 {ar(64+4*s,4)}, v{vXR+s}"]
            for db in range(4):
                for a in range(2):
                    r.append(f"ds_read_b64_tr_b16 {ar(16*s+4*db+2*a,2)}, v{vWR+db} offset:{s*4096+a*1024}")
            return r
        def mf(s, db): return f"{MF} {vr(vO+16*db,16)}, {ar(16*s+4*db,4)}, {ar(64+4*s,4)}, {vr(vO+16*db,16)}"
        for x in reads(0): A(x)
        A(f"s_cmp_ge_u32 s{sT}, 6\ns_cbranch_scc1 L_q_kv")
        self.issue_xw(sN2, sM2)
        A("s_branch L_q_go\nL_q_kv:")
        A(f"""
        s_sub_u32 s{sKSO}, s{sT}, 6
        s_lshl_b32 s{sKSO}, s{sKSO}, 14
        s_add_u32 m0, s{sKSO}, s{sW4K}
        s_mov_b32 s{sVSO}, s{sKSO}
        """)
        for x in self.dma_k(): A(x)
        A(f"s_add_u32 m0, m0, {3*SLOT}\ns_nop 0")
        for x in self.dma_v(): A(x)
        A("L_q_go:")
        for x in reads(1): A(x)
        for s in range(4):
            nxt = reads(s + 2) if s + 2 < 4 else []
            A(f"s_waitcnt lgkmcnt({9 if s < 3 else 0})")
            for db in range(4):
                A(mf(s, db))
                k = (len(nxt) + 3 - db) // (4 - db) if nxt else 0
                for x in nxt[:k]: A(x)
                nxt = nxt[k:]
        A(f"""
        s_mov_b32 s{sT0}, s{sN0}
        s_mov_b32 s{sN0}, s{sN1}
        s_mov_b32 s{sN1}, s{sN2}
        s_mov_b32 s{sN2}, s{sT0}
        s_mov_b32 s{sT0}, s{sM0}
        s_mov_b32 s{sM0}, s{sM1}
        s_mov_b32 s{sM1}, s{sM2}
        s_mov_b32 s{sM2}, s{sT0}
        s_add_u32 s{sT}, s{sT}, 1
        s_cmp_lt_u32 s{sT}, 8
        s_cbranch_scc1 L_q
        """)
        self.seg("q", m)

    def kread(self, s, half): return f"ds_read_b128 {ar(aK+4*s,4)}, v{vKR+s} offset:{8192*half}"
    def vread(self, i, half):
        ks, db = i // 4, i % 4
        return [f"ds_read_b64_tr_b16 {ar(aV+4*i+2*a,2)}, v{vVR+db} offset:{8192*half+ks*4096+a*2048}" for a in range(2)]
    def qk(self, s, S, c0=None):
        c = vr(S, 16) if s else (c0 if c0 is not None else vr(vCI, 16))
        return f"{MF} {vr(S,16)}, {ar(aK+4*s,4)}, {vr(vQ+4*s,4)}, {c}"
    def pv(self, i):
        ks, db = i // 4, i % 4
        return f"{MF} {vr(vO+16*db,16)}, {ar(aV+4*i,4)}, {vr(vP+4*ks,4)}, {vr(vO+16*db,16)}"
    def maxes(self, S):
        return [f"v_max3_f32 v{vMX0}, v{S}, v{S+1}, v{S+2}",
                f"v_max3_f32 v{vMX1}, v{S+3}, v{S+4}, v{S+5}",
                f"v_max3_f32 v{vMX0}, v{vMX0}, v{S+6}, v{S+7}",
                f"v_max3_f32 v{vMX1}, v{vMX1}, v{S+8}, v{S+9}",
                f"v_max3_f32 v{vMX0}, v{vMX0}, v{S+10}, v{S+11}",
                f"v_max3_f32 v{vMX1}, v{vMX1}, v{S+12}, v{S+13}",
                f"v_max3_f32 v{vMX0}, v{vMX0}, v{S+14}, v{S+15}",
                f"v_max_f32 v{vMX0}, v{vMX0}, v{vMX1}"]
    def sm_pair(self, S, i):
        return [f"v_exp_f32 v{S+2*i}, v{S+2*i}", f"v_exp_f32 v{S+2*i+1}, v{S+2*i+1}"]
    def sm_post(self, S, i):
        return [f"v_add_f32 v{vL0}, v{vL0}, v{S+2*i}", f"v_add_f32 v{vL1}, v{vL1}, v{S+2*i+1}",
                f"v_cvt_pk_bf16_f32 v{vP+i}, v{S+2*i}, v{S+2*i+1}"]

    def sec_P(self, Schk, khalf, vhalf, dma, tag, wait=True, extra=None):
        A = self.A
        if wait: A("s_waitcnt vmcnt(12) lgkmcnt(0)\ns_barrier")
        else: A("s_waitcnt lgkmcnt(0)")
        mx = self.maxes(Schk)
        gaps = [[] for _ in range(8)]
        if khalf is not None:
            for s in range(8): gaps[s // 2].append(self.kread(s, khalf))
        if vhalf is not None:
            for i in range(8): gaps[i] += self.vread(i, vhalf)
        if khalf is None: gaps[2].append("s_nop 3")
        gaps[4] += mx[0:3]; gaps[5] += mx[3:6]; gaps[6] += mx[6:8]
        gaps[7].append(f"v_cmp_lt_f32 vcc, {f2u(self.T):#x}, v{vMX0}")
        if dma:
            gaps[3].append(dma[0]); gaps[4].append(dma[1]); gaps[5].append(dma[2]); gaps[6].append(dma[3]); gaps[7].append(dma[4])
        if extra:
            for g, x in extra: gaps[g].append(x)
        for i in range(8):
            A(self.pv(i))
            for x in gaps[i]: A(x)
        A(f"s_cbranch_vccnz L_rs_{tag}\nL_rsb_{tag}:")

    def sec_Q(self, Snew, Ssm, extra=None, lg=10):
        A = self.A
        A(f"s_waitcnt lgkmcnt({lg})")
        gaps = [[] for _ in range(8)]
        for s in range(8):
            gaps[s] += self.sm_pair(Ssm, s)
            if s: gaps[s] += self.sm_post(Ssm, s - 1)
        if extra:
            for g, x in extra: gaps[g].append(x)
        for s in range(8):
            A(self.qk(s, Snew))
            for x in gaps[s]: A(x)
        for x in self.sm_post(Ssm, 7): A(x)

    def rescale(self, S, tag):
        A = self.A
        m = self.mark()
        A(f"""
        L_rs_{tag}:
        v_mov_b32 v{vMX1}, v{vMX0}
        s_nop 1
        v_permlane32_swap_b32 v{vMX0}, v{vMX1}
        v_max3_f32 v{vMX0}, v{vMX0}, v{vMX1}, 0
        v_sub_f32 v{vMX1}, 0, v{vMX0}
        v_exp_f32 v{vMX1}, v{vMX1}
        s_nop 7
        """)
        for i in range(16): A(f"v_sub_f32 v{S+i}, v{S+i}, v{vMX0}")
        for i in range(16): A(f"v_sub_f32 v{vCI+i}, v{vCI+i}, v{vMX0}")
        A(f"v_mul_f32 v{vL0}, v{vL0}, v{vMX1}\nv_mul_f32 v{vL1}, v{vL1}, v{vMX1}")
        for i in range(64): A(f"v_mul_f32 v{vO+i}, v{vO+i}, v{vMX1}")
        A(f"s_nop 1\ns_branch L_rsb_{tag}")
        self.seg("rs_" + tag, m)

    def attn_prologue(self):
        A = self.A
        m = self.mark()
        self.stamp()
        A(f"""
        v_lshrrev_b32 v6, 3, v0
        v_and_b32 v7, 7, v0
        v_bfe_u32 v1, v0, 4, 1
        v_lshlrev_b32 v1, 2, v1
        v_xor_b32 v1, v1, v7
        v_lshlrev_b32 v1, 4, v1
        s_lshl_b32 s{sT0}, s{sW}, 5
        v_add_u32 v5, s{sT0}, v6
        v_lshl_add_u32 v{vXD}, v5, 10, v1
        """)
        for p in range(1, 4): A(f"v_add_u32 v{vXD+p}, {p*7168}, v{vXD}")
        A(f"""
        s_mov_b32 s{sKSO}, {2*SLOT}
        s_mov_b32 s{sVSO}, {2*SLOT}
        s_add_u32 m0, s{sW4K}, {2*SLOT}
        s_waitcnt vmcnt(12)
        s_barrier
        """)
        for s in range(8): A(self.kread(s, 0))
        for x in self.dma_k(): A(x)
        for i in range(32):
            A(f"v_pk_mul_f32 {vr(vO+2*i,2)}, {vr(vO+2*i,2)}, s[{sSC}:{sSC+1}]")
        for i in range(32):
            A(f"v_cvt_pk_bf16_f32 v{vQ+i}, v{vO+2*i}, v{vO+2*i+1}")
        if self.dump == "q": self.dump_regs(vQ)
        A("s_waitcnt lgkmcnt(0)")
        for s in range(8):
            A(self.qk(s, vSA, "0"))
            A(self.kread(s, 1))
            for i in range(8): A(f"v_mov_b32 v{vO+8*s+i}, 0")
        A(f"""
        v_mov_b32 v{vL0}, 0
        v_mov_b32 v{vL1}, 0
        s_add_u32 m0, s{sW4K}, {5*SLOT}
        s_waitcnt vmcnt(12)
        s_barrier
        """)
        for x in self.dma_v(): A(x)
        for x in self.maxes(vSA): A(x)
        A(f"""
        v_mov_b32 v{vMX1}, v{vMX0}
        s_nop 1
        v_permlane32_swap_b32 v{vMX0}, v{vMX1}
        v_max_f32 v{vMX0}, v{vMX0}, v{vMX1}
        """)
        for i in range(16): A(f"v_sub_f32 v{vCI+i}, 0, v{vMX0}")
        for i in range(16): A(f"v_sub_f32 v{vSA+i}, v{vSA+i}, v{vMX0}")
        ex = []
        for i in range(8):
            for x in self.vread(i, 0): ex.append((i, x))
        for s in range(8): ex.append((s, f"v_add_u32 v{vKR+s}, {SLOT}, v{vKR+s}"))
        self.sec_Q(vSB, vSA, ex, lg=0)
        A(f"""
        s_mov_b32 s{sT}, 0
        s_mov_b32 s{sN0}, 0
        s_mov_b32 s{sN1}, {SLOT}
        s_mov_b32 s{sN2}, {2*SLOT}
        s_mov_b32 s{sKSO}, {3*SLOT}
        s_mov_b32 s{sVSO}, {3*SLOT}
        """)
        self.stamp()
        self.seg("ap", m)

    def attn_loop(self):
        A = self.A
        m = self.mark()
        A("L_a:")
        self.sec_P(vSB, 0, 1, [f"s_add_u32 m0, s{sN0}, s{sW4K}"] + self.dma_k(), "b",
                   extra=[(0, f"s_sub_u32 s{sD}, s{sN1}, s{sN0}")])
        self.sec_Q(vSA, vSB, [(2 * i, f"v_add_u32 v{vVR+i}, s{sD}, v{vVR+i}") for i in range(4)])
        self.sec_P(vSA, 1, 0, [f"s_add_u32 m0, m0, {3*SLOT}"] + self.dma_v(), "a",
                   extra=[(0, f"s_sub_u32 s{sD}, s{sN2}, s{sN1}")])
        self.sec_Q(vSB, vSA, [(s, f"v_add_u32 v{vKR+s}, s{sD}, v{vKR+s}") for s in range(8)])
        A(f"""
        s_mov_b32 s{sT0}, s{sN0}
        s_mov_b32 s{sN0}, s{sN1}
        s_mov_b32 s{sN1}, s{sN2}
        s_mov_b32 s{sN2}, s{sT0}
        s_add_u32 s{sKSO}, s{sKSO}, {SLOT}
        s_add_u32 s{sVSO}, s{sVSO}, {SLOT}
        s_cmp_eq_u32 s{sT}, s{sAT}
        s_cbranch_scc1 L_x_count
        L_x_count_b:
        s_sub_u32 s{sT0}, s{sT}, 2
        s_cmp_lt_u32 s{sT0}, 4
        s_cbranch_scc1 L_x_wo
        L_x_wo_b:
        s_cmp_ge_u32 s{sT}, 12
        s_cbranch_scc1 L_x_sw
        L_x_sw_b:
        s_add_u32 s{sT}, s{sT}, 1
        s_cmp_lt_u32 s{sT}, 15
        s_cbranch_scc1 L_a
        """)
        self.seg("loop", m)

    def loop_extras(self):
        A = self.A
        m = self.mark()
        A(f"""
        L_x_count:
        s_cmp_lg_u32 s{sW}, 0
        s_cbranch_scc1 L_x_count_b
        v_mov_b32 v1, 1
        v_mov_b32 v2, 0
        s_mov_b64 exec, 1
        buffer_atomic_add v1, v2, {sr(sDBG)}, 0 offen sc1
        s_mov_b64 exec, -1
        s_branch L_x_count_b
        L_x_wo:
        s_add_u32 s{sT1}, s{sT0}, s{sJ}
        s_and_b32 s{sT1}, s{sT1}, 7
        s_lshl_b32 s{sT1}, s{sT1}, 17
        s_lshl_b32 s{sT0}, s{sT0}, 14
        s_add_u32 s{sT0}, s{sT0}, {6*SLOT}
        s_add_u32 m0, s{sT0}, s{sW4K}
        s_nop 0
        """)
        for p in range(4): A(f"buffer_load_dwordx4 v{vXD+p}, {sr(sWO)}, s{sT1} offen offset:{1024*p} {self.woflag} lds")
        A(f"""
        s_branch L_x_wo_b
        L_x_sw:
        s_lshl_b32 s{sT0}, s{sT}, 1
        s_add_u32 s{sT0}, s{sT0}, s{sJ}
        s_add_u32 s{sT0}, s{sT0}, 4
        s_and_b32 s{sKSO}, s{sT0}, 7
        s_lshl_b32 s{sKSO}, s{sKSO}, 17
        s_add_u32 s{sT0}, s{sT0}, 1
        s_and_b32 s{sVSO}, s{sT0}, 7
        s_lshl_b32 s{sVSO}, s{sVSO}, 17
        s_cmp_lg_u32 s{sT}, 12
        s_cbranch_scc1 L_x_sw_b
        s_mov_b32 s{sK}, s{sWO}
        s_mov_b32 s{sK+1}, s{sWO+1}
        s_mov_b32 s{sK+2}, s{sWO+2}
        s_mov_b32 s{sV}, s{sWO}
        s_mov_b32 s{sV+1}, s{sWO+1}
        s_mov_b32 s{sV+2}, s{sWO+2}
        """)
        for p in range(4): A(f"v_mov_b32 v{vKD+p}, v{vXD+p}\nv_mov_b32 v{vVD+p}, v{vXD+p}")
        A(f"""
        v_mov_b32 v2, 0
        buffer_load_dword v{vCNT}, v2, {sr(sDBG)}, 0 offen sc1
        s_branch L_x_sw_b
        """)
        self.seg("x", m)

    def dump_regs(self, base):
        A = self.A
        A(f"""
        s_lshl_b32 s{sT0}, s{sJ}, 15
        s_add_u32 s{sT0}, s{sT0}, s{sOB}
        s_add_u32 s{sT1}, s{sT0}, 4096
        s_nop 1
        """)
        for i in range(8):
            A(f"buffer_store_dwordx4 {vr(base+4*i,4)}, v{vL16}, {sr(sWS)}, s{sT0 if i < 4 else sT1} offen offset:{1024*(i%4)}")
        A("s_waitcnt vmcnt(0)\ns_endpgm")

    def spin(self, label, vaddr, srd, cmp):
        A = self.A
        A(f"""
        s_mov_b32 s{sSPIN}, 0
        {label}:
        buffer_load_dword v1, v{vaddr}, {sr(srd)}, 0 offen sc1
        s_add_u32 s{sSPIN}, s{sSPIN}, 1
        s_cmp_gt_u32 s{sSPIN}, 200000
        s_cbranch_scc1 {label}_out
        s_waitcnt vmcnt(0)
        {cmp}
        s_cbranch_vccnz {label}
        {label}_out:
        """)

    def tail(self):
        A = self.A
        m = self.mark()
        self.stamp()
        self.sec_P(vSB, None, 1, None, "c", wait=False)
        for i in range(4):
            for x in self.sm_pair(vSB, i): A(x)
            if i:
                for x in self.sm_post(vSB, i - 1): A(x)
        for x in self.sm_pair(vSB, 4): A(x)
        for x in self.sm_post(vSB, 3): A(x)
        A("s_waitcnt lgkmcnt(0)\ns_nop 0")
        post = [self.sm_pair(vSB, 5) + self.sm_post(vSB, 4), self.sm_pair(vSB, 6) + self.sm_post(vSB, 5),
                self.sm_pair(vSB, 7) + self.sm_post(vSB, 6), self.sm_post(vSB, 7) + [f"v_add_f32 v{vL0}, v{vL0}, v{vL1}", "s_nop 0"]]
        for i in range(4):
            A(self.pv(i))
            for x in post[i]: A(x)
        fin = [[f"v_mov_b32 v{vL1}, v{vL0}", f"s_lshl_b32 s{sT0}, s{sJ}, 15", f"s_add_u32 s{sT0}, s{sT0}, s{sOB}"],
               [f"v_permlane32_swap_b32 v{vL0}, v{vL1}", f"s_add_u32 s{sT1}, s{sT0}, 4096", f"v_add_f32 v{vL0}, v{vL0}, v{vL1}"],
               [f"v_rcp_f32 v{vL0}, v{vL0}", "s_nop 0", f"v_mov_b32 v{vL1}, v{vL0}"], []]
        for i in range(4):
            A(self.pv(4 + i))
            for x in fin[i]: A(x)
        def woreads(n):
            ks = n % 8; st = n % 4
            return [f"ds_read_b64_tr_b16 {ar(224+8*st+4*nb+2*a,2)}, v{vOR+nb} offset:{ks*2048+a*1024}" for nb in range(2) for a in range(2)]
        for x in woreads(0) + woreads(1): A(x)
        for db in range(4):
            for i in range(8): A(f"v_pk_mul_f32 {vr(vO+16*db+2*i,2)}, {vr(vO+16*db+2*i,2)}, {vr(vL0,2)}")
            for i in range(8): A(f"v_cvt_pk_bf16_f32 v{vQ+8*db+i}, v{vO+16*db+2*i}, v{vO+16*db+2*i+1}")
            for i in (2 * db, 2 * db + 1):
                A(f"buffer_store_dwordx4 {vr(vQ+4*i,4)}, v{vL16}, {sr(sWS)}, s{sT0 if i < 4 else sT1} offen offset:{1024*(i%4)} sc1")
        self.stamp()
        if self.dump == "o": A("s_waitcnt vmcnt(0)\ns_endpgm")
        slots = [6, 7, 8, 9, 1, 4, 2, 5]
        def step(n, B, pre=(), post=()):
            for x in pre: A(x)
            nn = n + 2
            if nn < 64:
                if nn % 8 == 0:
                    d = (slots[nn // 8] - slots[nn // 8 - 1]) * SLOT
                    for nb in range(2): A(f"v_add_u32 v{vOR+nb}, {d & 0xffffffff:#x}, v{vOR+nb}")
                for x in woreads(nn): A(x)
            A(f"s_waitcnt lgkmcnt({min(8, 4*(63-n))})")
            for nb in range(2):
                c = "0" if n == 0 else vr(vY + 16 * nb, 16)
                A(f"{MF} {vr(vY+16*nb,16)}, {ar(224+8*(n%4)+4*nb,4)}, {B}, {c}")
                if nb == 0:
                    for x in post: A(x)
        for n in range(8): step(n, vr(vQ + 4 * n, 4))
        A(f"""
        s_waitcnt vmcnt(0)
        v_mov_b32 v1, 1
        s_mov_b64 exec, 1
        buffer_store_dword v1, v{vFOWN}, {sr(sWS)}, 0 offen sc1
        s_mov_b64 exec, -1
        v_cmp_ne_u32 vcc, 0x100, v{vCNT}
        s_barrier
        s_cbranch_vccz L_cnt_ok
        v_mov_b32 v2, 0
        """)
        self.spin("L_cnt", 2, sDBG, "v_cmp_ne_u32 vcc, 0x100, v1")
        A("L_cnt_ok:")
        self.stamp()
        self.spin("L_p1", vF1P, sWS, "v_cmp_ne_u32 vcc, 1, v1")
        self.stamp()
        def oload(i, ks):
            pre = []
            if ks == 0:
                pre = [f"s_add_u32 s{sT0}, s{sJ}, {i}", f"s_and_b32 s{sT0}, s{sT0}, 7", f"s_lshl_b32 s{sT0}, s{sT0}, 15",
                       f"s_add_u32 s{sT0}, s{sT0}, s{sOB}", f"s_add_u32 s{sT1}, s{sT0}, 4096"]
            return pre + [f"buffer_load_dwordx4 {ar(32*(i-1)+4*ks,4)}, v{vL16}, {sr(sWS)}, s{sT0 if ks < 4 else sT1} offen offset:{1024*(ks%4)} sc1"]
        for i in (1, 2):
            for ks in range(8):
                for x in oload(i, ks): A(x)
        for i in range(1, 8):
            for ks in range(8):
                n = 8 * i + ks
                younger = (7 - ks) + (8 if i < 7 else 0) + (ks if i < 6 else 0)
                step(n, ar(32 * (i - 1) + 4 * ks, 4), pre=[f"s_waitcnt vmcnt({younger})"], post=oload(i + 2, ks) if i < 6 else [])
        self.stamp()
        A(f"s_lshl_b32 s{sD}, s{sG}, 11\ns_add_u32 s{sD}, s{sD}, s{sPBs}")
        for v in (1, 2, 3):
            A(f"s_xor_b32 s{sT0}, s{sG}, {v}\ns_lshl_b32 s{sT0}, s{sT0}, 13\ns_add_u32 s{sN0+v-1}, s{sT0}, s{sD}")
        A("s_nop 1")
        for v in (1, 2, 3):
            for k in range(2):
                A(f"buffer_store_dwordx4 {vr(vY+8*v+4*k,4)}, v{vL16}, {sr(sWS)}, s{sN0+v-1} offen offset:{1024*k} sc1")
        A(f"s_lshl_b32 s{sD}, s{sG}, 13\ns_add_u32 s{sD}, s{sD}, s{sPBs}")
        for v in (1, 2, 3):
            A(f"s_xor_b32 s{sT0}, s{sG}, {v}\ns_lshl_b32 s{sT0}, s{sT0}, 11\ns_add_u32 s{sN0+v-1}, s{sT0}, s{sD}")
        A(f"""
        v_mov_b32 v1, 1
        s_waitcnt vmcnt(0)
        s_mov_b64 exec, 2
        buffer_store_dword v1, v{vFOWN}, {sr(sWS)}, 0 offen sc1
        s_mov_b64 exec, -1
        """)
        self.stamp()
        self.spin("L_p2", vF2P, sWS, "v_cmp_ne_u32 vcc, 1, v1")
        self.stamp()
        for v in (1, 2, 3):
            for k in range(2):
                A(f"buffer_load_dwordx4 {vr(vY+8*v+4*k,4)}, v{vL16}, {sr(sWS)}, s{sN0+v-1} offen offset:{1024*k} sc1")
        for v in (1, 2, 3):
            A(f"s_waitcnt vmcnt({2*(3-v)})")
            for i in range(8): A(f"v_add_f32 v{vY+i}, v{vY+i}, v{vY+8*v+i}")
        for i in range(4): A(f"v_cvt_pk_bf16_f32 v{vP+i}, v{vY+2*i}, v{vY+2*i+1}")
        A(f"""
        s_nop 1
        v_permlane32_swap_b32 v{vP}, v{vP+2}
        v_permlane32_swap_b32 v{vP+1}, v{vP+3}
        buffer_store_dwordx4 {vr(vP,4)}, v{vOUTA}, {sr(sOUT)}, 0 offen
        """)
        if self.stamps:
            A("s_waitcnt vmcnt(0)")
            self.stamp()
            A(f"""
            s_waitcnt lgkmcnt(0)
            s_cmp_lg_u32 s{sW}, 0
            s_cbranch_scc1 L_end
            s_add_u32 s{sX}, s18, {STAMP_OFF}
            s_addc_u32 s{sX+1}, s19, 0
            s_mov_b32 s{sX+2}, 0x100000
            s_lshl_b32 s{sT0}, s2, 8
            v_mov_b32 v4, s{sT0}
            s_mov_b64 exec, 1
            """)
            for i in range(self.nst):
                A(f"v_mov_b32 v2, s{STAMP0+2*i}\nv_mov_b32 v3, s{STAMP0+2*i+1}\nbuffer_store_dwordx2 v[2:3], v4, {sr(sX)}, 0 offen offset:{8*i}\ns_nop 1")
        A("L_end:\ns_endpgm")
        self.seg("tail", m)

    def build(self):
        m = self.mark(); self.prologue(); self.seg("pro", m)
        self.qphase(); self.attn_prologue(); self.attn_loop(); self.tail()
        self.loop_extras()
        for S, t in ((vSB, "b"), (vSA, "a"), (vSB, "c")): self.rescale(S, t)
        self.A("CODE_END:\ns_endpgm")
        S = self.segs
        errs = hazard.check(S["pro"] + S["q"] + S["q"] + S["ap"] + S["loop"] + S["loop"] + S["tail"], "main")
        def splice(seq, tag):
            out = []
            for l in seq:
                out.append(l)
                if l.strip() == f"s_cbranch_vccnz L_rs_{tag}": out += S["rs_" + tag]
            return out
        errs += hazard.check(splice(splice(S["loop"] + S["loop"], "a"), "b") + splice(S["tail"], "c"), "rare")
        errs += hazard.check(S["loop"] + S["x"] + S["loop"], "extras")
        errs = sorted(set(errs))
        for e in errs: print("HAZARD", e, file=sys.stderr)
        assert self.nst <= 13
        return kernel_file([(KN, 256, 256, 10 * SLOT)], {KN: (self.A.text(), 512, 256, 102)})

if __name__ == "__main__":
    import argparse
    ap = argparse.ArgumentParser()
    ap.add_argument("-o", default="main.s"); ap.add_argument("--stamps", action="store_true")
    ap.add_argument("--kv", default="nt"); ap.add_argument("--dump", default=None); ap.add_argument("-T", type=float, default=8.0)
    ap.add_argument("--nopf", action="store_true")
    a = ap.parse_args()
    g = Gen(a.stamps, a.kv, a.dump, a.T, not a.nopf)
    open(a.o, "w").write(g.build())
    print("stamps:", g.nst)
```

```python
import sys, math, struct
from asmlib import *
import hazard

STAMP_OFF = 240 << 20
SLOT = 16384
PB = 8 << 20
F1 = 16 << 20
F2 = F1 + 16384
WS_SIZE = F2 + 32768
SCALE = math.log2(math.e) / math.sqrt(128.0)
def f2u(x): return struct.unpack("<I", struct.pack("<f", x))[0]

sX, sWQ, sK, sV, sWO, sWS, sOUT, sDBG = 20, 24, 28, 32, 36, 40, 44, 48
sW, sB, sH, sJ, sG, sW4K, sCC, sT = 52, 53, 54, 55, 56, 57, 58, 59
sT0, sT1 = 60, 61
sSC = 62
sKSO, sVSO = 64, 65
sN0, sN1, sN2 = 66, 67, 68
sD = 69
sM0, sM1, sM2 = 70, 71, 3
sAT = 72
sOB = 73
sPBs = 74
sSPIN = 75
STAMP0 = 76
vKR, vVR, vKD, vVD, vXD, vWD, vWR, vXR = 8, 16, 20, 24, 28, 32, 36, 40
vOR = 44; vL0, vL1, vMX0, vMX1 = 46, 47, 48, 49
vCNT, vF1P, vF2P, vL16, vOUTA, vFOWN = 50, 51, 52, 53, 54, 55
vWRB, vXRB = 56, 60
vO, vSA, vSB, vCI, vP, vQ, vY = 64, 128, 144, 160, 176, 192, 224
aK, aV = 0, 32
def vr(b, n): return f"v[{b}:{b+n-1}]"
def ar(b, n): return f"a[{b}:{b+n-1}]"
def sr(b, n=4): return f"s[{b}:{b+n-1}]"
MF = "v_mfma_f32_32x32x16_bf16"

class Gen:
    def __init__(self, stamps=False, kvflag="nt", dump=None, T=8.0, prefetch_code=True, woflag=""):
        self.A = Asm(); self.stamps = stamps; self.kv = kvflag; self.dump = dump; self.T = T
        self.nst = 0; self.prefetch_code = prefetch_code; self.woflag = woflag
        self.segs = {}
    def stamp(self):
        if self.stamps:
            i = self.nst; self.nst += 1
            self.A(f"s_memrealtime s[{STAMP0+2*i}:{STAMP0+2*i+1}]")
    def mark(self): return len(self.A.l)
    def seg(self, name, a): self.segs[name] = self.A.l[a:]

    def prologue(self):
        A = self.A
        self.stamp()
        A(f"""
        s_cmp_ge_u32 s2, 256
        s_cbranch_scc1 L_end
        s_load_dwordx16 s[4:19], s[0:1], 0
        v_lshrrev_b32 v1, 6, v0
        v_and_b32 v0, 63, v0
        s_and_b32 s{sT0}, s2, 7
        v_readfirstlane_b32 s{sW}, v1
        s_lshr_b32 s{sG}, s{sT0}, 1
        s_and_b32 s{sT0}, s{sT0}, 1
        s_lshr_b32 s{sAT}, s2, 3
        s_and_b32 s{sT1}, s{sAT}, 3
        s_lshr_b32 s{sJ}, s{sAT}, 2
        s_lshl_b32 s{sB}, s{sT0}, 2
        s_add_u32 s{sB}, s{sB}, s{sT1}
        s_lshl_b32 s{sH}, s{sG}, 3
        s_add_u32 s{sH}, s{sH}, s{sJ}
        s_lshl_b32 s{sT1}, s{sT1}, 1
        s_add_u32 s{sCC}, s{sJ}, s{sT1}
        s_and_b32 s{sCC}, s{sCC}, 7
        s_and_b32 s{sAT}, s{sAT}, 7
        s_lshl_b32 s{sW4K}, s{sW}, 12
        v_lshrrev_b32 v2, 4, v0
        v_and_b32 v3, 15, v0
        v_lshlrev_b32 v4, 2, v2
        v_xor_b32 v4, v4, v3
        v_lshlrev_b32 v4, 4, v4
        s_lshl_b32 s{sT0}, s{sW}, 4
        v_add_u32 v5, s{sT0}, v2
        v_lshl_add_u32 v{vWD}, v5, 13, v4
        v_lshl_add_u32 v{vVD}, v5, 8, v4
        """)
        for p in range(1, 4):
            A(f"v_add_u32 v{vWD+p}, {p*(4*8192-1024)}, v{vWD}")
        A(f"""
        v_lshrrev_b32 v6, 3, v0
        v_and_b32 v7, 7, v0
        s_lshl_b32 s{sT0}, s{sW}, 5
        v_add_u32 v5, s{sT0}, v6
        v_xor_b32 v1, v2, v7
        v_lshlrev_b32 v1, 4, v1
        v_lshl_add_u32 v{vXD}, v5, 10, v1
        v_xor_b32 v1, 64, v1
        v_lshl_add_u32 v{vXD+1}, v5, 10, v1
        s_cmp_eq_u32 s{sW}, 3
        s_cselect_b32 s{sT0}, 16384, 0
        s_sub_u32 s{sT0}, 14336, s{sT0}
        v_add_u32 v{vXD+1}, 7168, v{vXD+1}
        v_add_u32 v{vXD+2}, s{sT0}, v{vXD}
        v_add_u32 v{vXD+3}, s{sT0}, v{vXD+1}
        s_mul_i32 s{sT0}, s{sB}, 114688
        s_lshl_b32 s{sT1}, s{sH}, 8
        s_waitcnt lgkmcnt(0)
        s_add_u32 s{sX}, s4, s{sT0}
        s_addc_u32 s{sX+1}, s5, 0
        s_mov_b32 s{sX+2}, 114688
        s_mov_b32 s{sX+3}, 0x20000
        s_add_u32 s{sWQ}, s10, s{sT1}
        s_addc_u32 s{sWQ+1}, s11, 0
        s_sub_u32 s{sWQ+2}, 0x400000, s{sT1}
        s_mov_b32 s{sWQ+3}, 0x20000
        s_add_u32 s{sOUT}, s14, s{sT0}
        s_addc_u32 s{sOUT+1}, s15, 0
        s_mov_b32 s{sOUT+2}, 114688
        s_mov_b32 s{sOUT+3}, 0x20000
        """)
        A(f"""
        s_mov_b32 s{sN0}, {6*SLOT}
        s_mov_b32 s{sN1}, {8*SLOT}
        s_mov_b32 s{sN2}, {2*SLOT}
        s_mov_b32 s{sM0}, {7*SLOT}
        s_mov_b32 s{sM1}, {9*SLOT}
        s_mov_b32 s{sM2}, {5*SLOT}
        """)
        self.issue_xw(sN0, sM0)
        self.issue_xw(sN1, sM1)
        self.stamp()
        A(f"""
        s_lshl_b32 s{sT0}, s{sB}, 5
        s_add_u32 s{sT0}, s{sT0}, s{sH}
        s_lshl_b32 s{sT1}, s{sT0}, 18
        s_add_u32 s{sK}, s6, s{sT1}
        s_addc_u32 s{sK+1}, s7, 0
        s_mov_b32 s{sK+2}, 0x40000
        s_mov_b32 s{sK+3}, 0x20000
        s_add_u32 s{sV}, s8, s{sT1}
        s_addc_u32 s{sV+1}, s9, 0
        s_mov_b32 s{sV+2}, 0x40000
        s_mov_b32 s{sV+3}, 0x20000
        s_lshl_b32 s{sT0}, s{sG}, 20
        s_lshl_b32 s{sT1}, s{sJ}, 7
        s_add_u32 s{sT0}, s{sT0}, s{sT1}
        s_add_u32 s{sWO}, s12, s{sT0}
        s_addc_u32 s{sWO+1}, s13, 0
        s_sub_u32 s{sWO+2}, 0x400000, s{sT0}
        s_mov_b32 s{sWO+3}, 0x20000
        s_mov_b32 s{sWS}, s18
        s_mov_b32 s{sWS+1}, s19
        s_mov_b32 s{sWS+2}, {WS_SIZE}
        s_mov_b32 s{sWS+3}, 0x20000
        s_mov_b32 s{sDBG}, s16
        s_mov_b32 s{sDBG+1}, s17
        s_mov_b32 s{sDBG+2}, 256
        s_mov_b32 s{sDBG+3}, 0x20000
        s_mov_b32 s{sSC}, {f2u(SCALE):#x}
        s_mov_b32 s{sSC+1}, {f2u(SCALE):#x}
        """)
        A(f"""
        s_lshl_b32 s{sT0}, s{sB}, 2
        s_add_u32 s{sT0}, s{sT0}, s{sG}
        s_lshl_b32 s{sOB}, s{sT0}, 18
        s_lshl_b32 s{sT1}, s{sW}, 13
        s_add_u32 s{sOB}, s{sOB}, s{sT1}
        s_lshl_b32 s{sT0}, s{sT0}, 2
        s_add_u32 s{sT0}, s{sT0}, s{sW}
        s_lshl_b32 s{sT0}, s{sT0}, 7
        s_add_u32 s{sT0}, s{sT0}, {F1}
        v_and_b32 v1, 7, v0
        v_lshl_add_u32 v{vF1P}, v1, 2, s{sT0}
        s_lshl_b32 s{sT1}, s{sJ}, 2
        s_add_u32 s{sT0}, s{sT0}, s{sT1}
        v_mov_b32 v{vFOWN}, s{sT0}
        s_lshl_b32 s{sT0}, s{sB}, 3
        s_add_u32 s{sT0}, s{sT0}, s{sJ}
        s_lshl_b32 s{sT0}, s{sT0}, 2
        s_add_u32 s{sT0}, s{sT0}, s{sW}
        s_lshl_b32 s{sPBs}, s{sT0}, 15
        s_add_u32 s{sPBs}, s{sPBs}, {PB}
        s_lshl_b32 s{sT0}, s{sT0}, 7
        s_add_u32 s{sT0}, s{sT0}, {F2}
        v_and_b32 v1, 3, v0
        v_lshl_add_u32 v{vF2P}, v1, 2, s{sT0}
        s_lshl_b32 s{sT1}, s{sG}, 2
        s_add_u32 s{sT0}, s{sT0}, s{sT1}
        v_writelane_b32 v{vFOWN}, s{sT0}, 1
        v_mov_b32 v1, 0
        v_mov_b32 v{vCNT}, 0
        s_mov_b64 exec, 3
        buffer_store_dword v1, v{vFOWN}, {sr(sWS)}, 0 offen sc1
        s_mov_b64 exec, -1
        v_lshlrev_b32 v{vL16}, 4, v0
        """)
        if self.prefetch_code:
            A(f"""
            s_getpc_b64 s[{sT0}:{sT1}]
            v_lshlrev_b32 v1, 7, v0
            s_lshl_b32 s{sD}, s{sW}, 13
            v_add_u32 v1, s{sD}, v1
            s_mov_b32 s{sD}, CODE_END - L_pcref
            L_pcref:
            v_min_u32 v1, s{sD}, v1
            global_load_dword v{vMX0}, v1, s[{sT0}:{sT1}]
            """)
        A(f"""
        s_lshl_b32 s{sT0}, s{sW}, 4
        v_add_u32 v5, s{sT0}, v2
        """)
        for p in range(4):
            A(f"""
            v_add_u32 v4, {4*p}, v2
            v_xor_b32 v4, v4, v3
            v_lshlrev_b32 v4, 4, v4
            v_lshl_add_u32 v{vKD+p}, v5, 8, v4
            """)
        for p in range(1, 4): A(f"v_mov_b32 v{vVD+p}, v{vVD}")
        A(f"""
        v_and_b32 v1, 31, v0
        v_lshrrev_b32 v2, 5, v0
        v_bfe_u32 v3, v0, 2, 2
        v_and_b32 v4, 3, v0
        v_bfe_u32 v5, v0, 4, 1
        v_and_b32 v6, 15, v1
        v_xor_b32 v6, v6, v2
        v_lshlrev_b32 v6, 4, v6
        v_lshl_add_u32 v{vKR}, v1, 8, v6
        """)
        for s in range(1, 8): A(f"v_xor_b32 v{vKR+s}, {s*32}, v{vKR}")
        A(f"""
        v_bfe_u32 v6, v1, 1, 3
        v_xor_b32 v6, v6, v2
        v_lshlrev_b32 v6, 4, v6
        v_lshl_add_u32 v6, v1, 7, v6
        v_add_u32 v{vXRB}, s{sW4K}, v6
        """)
        for s in range(1, 4): A(f"v_xor_b32 v{vXRB+s}, {s*32}, v{vXRB}")
        A(f"""
        v_lshlrev_b32 v6, 6, v3
        v_lshl_add_u32 v6, v5, 5, v6
        v_lshl_add_u32 v7, v4, 3, v6
        v_lshl_add_u32 v7, v3, 8, v7
        v_lshl_add_u32 v7, v2, 10, v7
        v_add_u32 v{vVR}, {3*SLOT}, v7
        """)
        for db in range(1, 4): A(f"v_xor_b32 v{vVR+db}, {db*64}, v{vVR}")
        A(f"""
        v_and_b32 v7, 1, v4
        v_lshl_add_u32 v6, v7, 4, v6
        v_lshrrev_b32 v7, 1, v4
        v_lshl_add_u32 v6, v7, 3, v6
        v_lshl_add_u32 v6, v3, 8, v6
        v_lshl_add_u32 v{vWRB}, v2, 11, v6
        """)
        for db in range(1, 4): A(f"v_xor_b32 v{vWRB+db}, {db*64}, v{vWRB}")
        A(f"""
        v_xor_b32 v6, s{sG}, v5
        v_lshlrev_b32 v6, 5, v6
        v_lshrrev_b32 v7, 1, v3
        v_lshlrev_b32 v7, 6, v7
        v_xor_b32 v6, v6, v7
        v_lshl_add_u32 v6, v4, 3, v6
        v_lshl_add_u32 v6, v3, 7, v6
        v_lshl_add_u32 v6, v2, 9, v6
        v_add_u32 v{vOR}, {6*SLOT}, v6
        v_xor_b32 v{vOR+1}, 64, v{vOR}
        """)
        A(f"""
        s_lshl_b32 s{sT0}, s{sW}, 15
        s_lshl_b32 s{sT1}, s{sJ}, 7
        s_add_u32 s{sT0}, s{sT0}, s{sT1}
        s_lshl_b32 s{sT1}, s{sG}, 5
        s_add_u32 s{sT0}, s{sT0}, s{sT1}
        v_lshl_add_u32 v6, v1, 10, s{sT0}
        v_lshl_add_u32 v{vOUTA}, v2, 4, v6
        """)
        for i in range(64): A(f"v_mov_b32 v{vO+i}, 0")
        A(f"s_mov_b32 s{sT}, 0")

    def issue_xw(self, sx, sw):
        A = self.A
        A(f"""
        s_add_u32 m0, s{sx}, s{sW4K}
        s_lshl_b32 s{sT0}, s{sCC}, 7
        s_lshl_b32 s{sT1}, s{sCC}, 19
        """)
        for p in range(4): A(f"buffer_load_dwordx4 v{vXD+p}, {sr(sX)}, s{sT0} offen offset:{1024*p} lds")
        A(f"s_add_u32 m0, s{sw}, s{sW4K}\ns_add_u32 s{sCC}, s{sCC}, 1")
        for p in range(4): A(f"buffer_load_dwordx4 v{vWD+p}, {sr(sWQ)}, s{sT1} offen offset:{1024*p} lds")
        A(f"s_and_b32 s{sCC}, s{sCC}, 7")

    def dma_k(self): return [f"buffer_load_dwordx4 v{vKD+p}, {sr(sK)}, s{sKSO} offen offset:{1024*p} {self.kv} lds" for p in range(4)]
    def dma_v(self): return [f"buffer_load_dwordx4 v{vVD+p}, {sr(sV)}, s{sVSO} offen offset:{1024*p} {self.kv} lds" for p in range(4)]

    def qphase(self):
        A = self.A
        m = self.mark()
        A("L_q:")
        for i in range(4): A(f"v_add_u32 v{vWR+i}, s{sM0}, v{vWRB+i}")
        for i in range(4): A(f"v_add_u32 v{vXR+i}, s{sN0}, v{vXRB+i}")
        A("s_waitcnt vmcnt(8)\ns_barrier")
        def reads(s):
            r = [f"ds_read_b128 {ar(64+4*s,4)}, v{vXR+s}"]
            for db in range(4):
                for a in range(2):
                    r.append(f"ds_read_b64_tr_b16 {ar(16*s+4*db+2*a,2)}, v{vWR+db} offset:{s*4096+a*1024}")
            return r
        def mf(s, db): return f"{MF} {vr(vO+16*db,16)}, {ar(16*s+4*db,4)}, {ar(64+4*s,4)}, {vr(vO+16*db,16)}"
        for x in reads(0): A(x)
        A(f"s_cmp_ge_u32 s{sT}, 6\ns_cbranch_scc1 L_q_kv")
        self.issue_xw(sN2, sM2)
        A("s_branch L_q_go\nL_q_kv:")
        A(f"""
        s_sub_u32 s{sKSO}, s{sT}, 6
        s_lshl_b32 s{sKSO}, s{sKSO}, 14
        s_add_u32 m0, s{sKSO}, s{sW4K}
        s_mov_b32 s{sVSO}, s{sKSO}
        """)
        for x in self.dma_k(): A(x)
        A(f"s_add_u32 m0, m0, {3*SLOT}\ns_nop 0")
        for x in self.dma_v(): A(x)
        A("L_q_go:")
        for x in reads(1): A(x)
        for s in range(4):
            nxt = reads(s + 2) if s + 2 < 4 else []
            A(f"s_waitcnt lgkmcnt({9 if s < 3 else 0})")
            for db in range(4):
                A(mf(s, db))
                k = (len(nxt) + 3 - db) // (4 - db) if nxt else 0
                for x in nxt[:k]: A(x)
                nxt = nxt[k:]
        A(f"""
        s_mov_b32 s{sT0}, s{sN0}
        s_mov_b32 s{sN0}, s{sN1}
        s_mov_b32 s{sN1}, s{sN2}
        s_mov_b32 s{sN2}, s{sT0}
        s_mov_b32 s{sT0}, s{sM0}
        s_mov_b32 s{sM0}, s{sM1}
        s_mov_b32 s{sM1}, s{sM2}
        s_mov_b32 s{sM2}, s{sT0}
        s_add_u32 s{sT}, s{sT}, 1
        s_cmp_lt_u32 s{sT}, 8
        s_cbranch_scc1 L_q
        """)
        self.seg("q", m)

    def kread(self, s, half): return f"ds_read_b128 {ar(aK+4*s,4)}, v{vKR+s} offset:{8192*half}"
    def vread(self, i, half):
        ks, db = i // 4, i % 4
        return [f"ds_read_b64_tr_b16 {ar(aV+4*i+2*a,2)}, v{vVR+db} offset:{8192*half+ks*4096+a*2048}" for a in range(2)]
    def qk(self, s, S, c0=None):
        c = vr(S, 16) if s else (c0 if c0 is not None else vr(vCI, 16))
        return f"{MF} {vr(S,16)}, {ar(aK+4*s,4)}, {vr(vQ+4*s,4)}, {c}"
    def pv(self, i):
        ks, db = i // 4, i % 4
        return f"{MF} {vr(vO+16*db,16)}, {ar(aV+4*i,4)}, {vr(vP+4*ks,4)}, {vr(vO+16*db,16)}"
    def maxes(self, S):
        return [f"v_max3_f32 v{vMX0}, v{S}, v{S+1}, v{S+2}",
                f"v_max3_f32 v{vMX1}, v{S+3}, v{S+4}, v{S+5}",
                f"v_max3_f32 v{vMX0}, v{vMX0}, v{S+6}, v{S+7}",
                f"v_max3_f32 v{vMX1}, v{vMX1}, v{S+8}, v{S+9}",
                f"v_max3_f32 v{vMX0}, v{vMX0}, v{S+10}, v{S+11}",
                f"v_max3_f32 v{vMX1}, v{vMX1}, v{S+12}, v{S+13}",
                f"v_max3_f32 v{vMX0}, v{vMX0}, v{S+14}, v{S+15}",
                f"v_max_f32 v{vMX0}, v{vMX0}, v{vMX1}"]
    def sm_pair(self, S, i):
        return [f"v_exp_f32 v{S+2*i}, v{S+2*i}", f"v_exp_f32 v{S+2*i+1}, v{S+2*i+1}"]
    def sm_post(self, S, i):
        return [f"v_add_f32 v{vL0}, v{vL0}, v{S+2*i}", f"v_add_f32 v{vL1}, v{vL1}, v{S+2*i+1}",
                f"v_cvt_pk_bf16_f32 v{vP+i}, v{S+2*i}, v{S+2*i+1}"]

    def sec_P(self, Schk, khalf, vhalf, dma, tag, wait=True, extra=None):
        A = self.A
        if wait: A("s_waitcnt vmcnt(12) lgkmcnt(0)\ns_barrier")
        else: A("s_waitcnt lgkmcnt(0)")
        mx = self.maxes(Schk)
        gaps = [[] for _ in range(8)]
        if khalf is not None:
            for s in range(8): gaps[s // 2].append(self.kread(s, khalf))
        if vhalf is not None:
            for i in range(8): gaps[i] += self.vread(i, vhalf)
        if khalf is None: gaps[2].append("s_nop 3")
        gaps[4] += mx[0:3]; gaps[5] += mx[3:6]; gaps[6] += mx[6:8]
        gaps[7].append(f"v_cmp_lt_f32 vcc, {f2u(self.T):#x}, v{vMX0}")
        if dma:
            gaps[3].append(dma[0]); gaps[4].append(dma[1]); gaps[5].append(dma[2]); gaps[6].append(dma[3]); gaps[7].append(dma[4])
        if extra:
            for g, x in extra: gaps[g].append(x)
        for i in range(8):
            A(self.pv(i))
            for x in gaps[i]: A(x)
        A(f"s_cbranch_vccnz L_rs_{tag}\nL_rsb_{tag}:")

    def sec_Q(self, Snew, Ssm, extra=None, lg=10):
        A = self.A
        A(f"s_waitcnt lgkmcnt({lg})")
        gaps = [[] for _ in range(8)]
        for s in range(8):
            gaps[s] += self.sm_pair(Ssm, s)
            if s: gaps[s] += self.sm_post(Ssm, s - 1)
        if extra:
            for g, x in extra: gaps[g].append(x)
        for s in range(8):
            A(self.qk(s, Snew))
            for x in gaps[s]: A(x)
        for x in self.sm_post(Ssm, 7): A(x)

    def rescale(self, S, tag):
        A = self.A
        m = self.mark()
        A(f"""
        L_rs_{tag}:
        v_mov_b32 v{vMX1}, v{vMX0}
        s_nop 1
        v_permlane32_swap_b32 v{vMX0}, v{vMX1}
        v_max3_f32 v{vMX0}, v{vMX0}, v{vMX1}, 0
        v_sub_f32 v{vMX1}, 0, v{vMX0}
        v_exp_f32 v{vMX1}, v{vMX1}
        s_nop 7
        """)
        for i in range(16): A(f"v_sub_f32 v{S+i}, v{S+i}, v{vMX0}")
        for i in range(16): A(f"v_sub_f32 v{vCI+i}, v{vCI+i}, v{vMX0}")
        A(f"v_mul_f32 v{vL0}, v{vL0}, v{vMX1}\nv_mul_f32 v{vL1}, v{vL1}, v{vMX1}")
        for i in range(64): A(f"v_mul_f32 v{vO+i}, v{vO+i}, v{vMX1}")
        A(f"s_nop 1\ns_branch L_rsb_{tag}")
        self.seg("rs_" + tag, m)

    def attn_prologue(self):
        A = self.A
        m = self.mark()
        self.stamp()
        A(f"""
        v_lshrrev_b32 v6, 3, v0
        v_and_b32 v7, 7, v0
        v_bfe_u32 v1, v0, 4, 1
        v_lshlrev_b32 v1, 2, v1
        v_xor_b32 v1, v1, v7
        v_lshlrev_b32 v1, 4, v1
        s_lshl_b32 s{sT0}, s{sW}, 5
        v_add_u32 v5, s{sT0}, v6
        v_lshl_add_u32 v{vXD}, v5, 10, v1
        """)
        for p in range(1, 4): A(f"v_add_u32 v{vXD+p}, {p*7168}, v{vXD}")
        A(f"""
        s_mov_b32 s{sKSO}, {2*SLOT}
        s_mov_b32 s{sVSO}, {2*SLOT}
        s_add_u32 m0, s{sW4K}, {2*SLOT}
        s_waitcnt vmcnt(12)
        s_barrier
        """)
        for s in range(8): A(self.kread(s, 0))
        for x in self.dma_k(): A(x)
        for i in range(32):
            A(f"v_pk_mul_f32 {vr(vO+2*i,2)}, {vr(vO+2*i,2)}, s[{sSC}:{sSC+1}]")
        for i in range(32):
            A(f"v_cvt_pk_bf16_f32 v{vQ+i}, v{vO+2*i}, v{vO+2*i+1}")
        if self.dump == "q": self.dump_regs(vQ)
        A("s_waitcnt lgkmcnt(0)")
        for s in range(8):
            A(self.qk(s, vSA, "0"))
            A(self.kread(s, 1))
            for i in range(8): A(f"v_mov_b32 v{vO+8*s+i}, 0")
        A(f"""
        v_mov_b32 v{vL0}, 0
        v_mov_b32 v{vL1}, 0
        s_add_u32 m0, s{sW4K}, {5*SLOT}
        s_waitcnt vmcnt(12)
        s_barrier
        """)
        for x in self.dma_v(): A(x)
        for x in self.maxes(vSA): A(x)
        A(f"""
        v_mov_b32 v{vMX1}, v{vMX0}
        s_nop 1
        v_permlane32_swap_b32 v{vMX0}, v{vMX1}
        v_max_f32 v{vMX0}, v{vMX0}, v{vMX1}
        """)
        for i in range(16): A(f"v_sub_f32 v{vCI+i}, 0, v{vMX0}")
        for i in range(16): A(f"v_sub_f32 v{vSA+i}, v{vSA+i}, v{vMX0}")
        ex = []
        for i in range(8):
            for x in self.vread(i, 0): ex.append((i, x))
        for s in range(8): ex.append((s, f"v_add_u32 v{vKR+s}, {SLOT}, v{vKR+s}"))
        self.sec_Q(vSB, vSA, ex, lg=0)
        A(f"""
        s_mov_b32 s{sT}, 0
        s_mov_b32 s{sN0}, 0
        s_mov_b32 s{sN1}, {SLOT}
        s_mov_b32 s{sN2}, {2*SLOT}
        s_mov_b32 s{sKSO}, {3*SLOT}
        s_mov_b32 s{sVSO}, {3*SLOT}
        """)
        self.stamp()
        self.seg("ap", m)

    def attn_loop(self):
        A = self.A
        m = self.mark()
        A("L_a:")
        self.sec_P(vSB, 0, 1, [f"s_add_u32 m0, s{sN0}, s{sW4K}"] + self.dma_k(), "b",
                   extra=[(0, f"s_sub_u32 s{sD}, s{sN1}, s{sN0}")])
        self.sec_Q(vSA, vSB, [(2 * i, f"v_add_u32 v{vVR+i}, s{sD}, v{vVR+i}") for i in range(4)])
        self.sec_P(vSA, 1, 0, [f"s_add_u32 m0, m0, {3*SLOT}"] + self.dma_v(), "a",
                   extra=[(0, f"s_sub_u32 s{sD}, s{sN2}, s{sN1}")])
        self.sec_Q(vSB, vSA, [(s, f"v_add_u32 v{vKR+s}, s{sD}, v{vKR+s}") for s in range(8)])
        A(f"""
        s_mov_b32 s{sT0}, s{sN0}
        s_mov_b32 s{sN0}, s{sN1}
        s_mov_b32 s{sN1}, s{sN2}
        s_mov_b32 s{sN2}, s{sT0}
        s_add_u32 s{sKSO}, s{sKSO}, {SLOT}
        s_add_u32 s{sVSO}, s{sVSO}, {SLOT}
        s_cmp_eq_u32 s{sT}, s{sAT}
        s_cbranch_scc1 L_x_count
        L_x_count_b:
        s_sub_u32 s{sT0}, s{sT}, 2
        s_cmp_lt_u32 s{sT0}, 4
        s_cbranch_scc1 L_x_wo
        L_x_wo_b:
        s_cmp_ge_u32 s{sT}, 12
        s_cbranch_scc1 L_x_sw
        L_x_sw_b:
        s_add_u32 s{sT}, s{sT}, 1
        s_cmp_lt_u32 s{sT}, 15
        s_cbranch_scc1 L_a
        """)
        self.seg("loop", m)

    def loop_extras(self):
        A = self.A
        m = self.mark()
        A(f"""
        L_x_count:
        s_cmp_lg_u32 s{sW}, 0
        s_cbranch_scc1 L_x_count_b
        v_mov_b32 v1, 1
        v_mov_b32 v2, 0
        s_mov_b64 exec, 1
        buffer_atomic_add v1, v2, {sr(sDBG)}, 0 offen sc1
        s_mov_b64 exec, -1
        s_branch L_x_count_b
        L_x_wo:
        s_add_u32 s{sT1}, s{sT0}, s{sJ}
        s_and_b32 s{sT1}, s{sT1}, 7
        s_lshl_b32 s{sT1}, s{sT1}, 17
        s_lshl_b32 s{sT0}, s{sT0}, 14
        s_add_u32 s{sT0}, s{sT0}, {6*SLOT}
        s_add_u32 m0, s{sT0}, s{sW4K}
        s_nop 0
        """)
        for p in range(4): A(f"buffer_load_dwordx4 v{vXD+p}, {sr(sWO)}, s{sT1} offen offset:{1024*p} {self.woflag} lds")
        A(f"""
        s_branch L_x_wo_b
        L_x_sw:
        s_lshl_b32 s{sT0}, s{sT}, 1
        s_add_u32 s{sT0}, s{sT0}, s{sJ}
        s_add_u32 s{sT0}, s{sT0}, 4
        s_and_b32 s{sKSO}, s{sT0}, 7
        s_lshl_b32 s{sKSO}, s{sKSO}, 17
        s_add_u32 s{sT0}, s{sT0}, 1
        s_and_b32 s{sVSO}, s{sT0}, 7
        s_lshl_b32 s{sVSO}, s{sVSO}, 17
        s_cmp_lg_u32 s{sT}, 12
        s_cbranch_scc1 L_x_sw_b
        s_mov_b32 s{sK}, s{sWO}
        s_mov_b32 s{sK+1}, s{sWO+1}
        s_mov_b32 s{sK+2}, s{sWO+2}
        s_mov_b32 s{sV}, s{sWO}
        s_mov_b32 s{sV+1}, s{sWO+1}
        s_mov_b32 s{sV+2}, s{sWO+2}
        """)
        for p in range(4): A(f"v_mov_b32 v{vKD+p}, v{vXD+p}\nv_mov_b32 v{vVD+p}, v{vXD+p}")
        A(f"""
        v_mov_b32 v2, 0
        buffer_load_dword v{vCNT}, v2, {sr(sDBG)}, 0 offen sc1
        s_branch L_x_sw_b
        """)
        self.seg("x", m)

    def dump_regs(self, base):
        A = self.A
        A(f"""
        s_lshl_b32 s{sT0}, s{sJ}, 15
        s_add_u32 s{sT0}, s{sT0}, s{sOB}
        s_add_u32 s{sT1}, s{sT0}, 4096
        s_nop 1
        """)
        for i in range(8):
            A(f"buffer_store_dwordx4 {vr(base+4*i,4)}, v{vL16}, {sr(sWS)}, s{sT0 if i < 4 else sT1} offen offset:{1024*(i%4)}")
        A("s_waitcnt vmcnt(0)\ns_endpgm")

    def spin(self, label, vaddr, srd, cmp):
        A = self.A
        A(f"""
        s_mov_b32 s{sSPIN}, 0
        {label}:
        buffer_load_dword v1, v{vaddr}, {sr(srd)}, 0 offen sc1
        s_add_u32 s{sSPIN}, s{sSPIN}, 1
        s_cmp_gt_u32 s{sSPIN}, 200000
        s_cbranch_scc1 {label}_out
        s_waitcnt vmcnt(0)
        {cmp}
        s_cbranch_vccnz {label}
        {label}_out:
        """)

    def tail(self):
        A = self.A
        m = self.mark()
        self.stamp()
        self.sec_P(vSB, None, 1, None, "c", wait=False)
        for i in range(4):
            for x in self.sm_pair(vSB, i): A(x)
            if i:
                for x in self.sm_post(vSB, i - 1): A(x)
        for x in self.sm_pair(vSB, 4): A(x)
        for x in self.sm_post(vSB, 3): A(x)
        A("s_waitcnt lgkmcnt(0)\ns_nop 0")
        post = [self.sm_pair(vSB, 5) + self.sm_post(vSB, 4), self.sm_pair(vSB, 6) + self.sm_post(vSB, 5),
                self.sm_pair(vSB, 7) + self.sm_post(vSB, 6), self.sm_post(vSB, 7) + [f"v_add_f32 v{vL0}, v{vL0}, v{vL1}", "s_nop 0"]]
        for i in range(4):
            A(self.pv(i))
            for x in post[i]: A(x)
        fin = [[f"v_mov_b32 v{vL1}, v{vL0}", f"s_lshl_b32 s{sT0}, s{sJ}, 15", f"s_add_u32 s{sT0}, s{sT0}, s{sOB}"],
               [f"v_permlane32_swap_b32 v{vL0}, v{vL1}", f"s_add_u32 s{sT1}, s{sT0}, 4096", f"v_add_f32 v{vL0}, v{vL0}, v{vL1}"],
               [f"v_rcp_f32 v{vL0}, v{vL0}", "s_nop 0", f"v_mov_b32 v{vL1}, v{vL0}"], []]
        for i in range(4):
            A(self.pv(4 + i))
            for x in fin[i]: A(x)
        def woreads(n):
            ks = n % 8; st = n % 4
            return [f"ds_read_b64_tr_b16 {ar(224+8*st+4*nb+2*a,2)}, v{vOR+nb} offset:{ks*2048+a*1024}" for nb in range(2) for a in range(2)]
        for x in woreads(0) + woreads(1): A(x)
        for db in range(4):
            for i in range(8): A(f"v_pk_mul_f32 {vr(vO+16*db+2*i,2)}, {vr(vO+16*db+2*i,2)}, {vr(vL0,2)}")
            for i in range(8): A(f"v_cvt_pk_bf16_f32 v{vQ+8*db+i}, v{vO+16*db+2*i}, v{vO+16*db+2*i+1}")
            for i in (2 * db, 2 * db + 1):
                A(f"buffer_store_dwordx4 {vr(vQ+4*i,4)}, v{vL16}, {sr(sWS)}, s{sT0 if i < 4 else sT1} offen offset:{1024*(i%4)} sc1")
        self.stamp()
        if self.dump == "o": A("s_waitcnt vmcnt(0)\ns_endpgm")
        slots = [6, 7, 8, 9, 1, 4, 2, 5]
        def step(n, B, pre=(), post=()):
            for x in pre: A(x)
            nn = n + 2
            if nn < 64:
                if nn % 8 == 0:
                    d = (slots[nn // 8] - slots[nn // 8 - 1]) * SLOT
                    for nb in range(2): A(f"v_add_u32 v{vOR+nb}, {d & 0xffffffff:#x}, v{vOR+nb}")
                for x in woreads(nn): A(x)
            A(f"s_waitcnt lgkmcnt({min(8, 4*(63-n))})")
            for nb in range(2):
                c = "0" if n == 0 else vr(vY + 16 * nb, 16)
                A(f"{MF} {vr(vY+16*nb,16)}, {ar(224+8*(n%4)+4*nb,4)}, {B}, {c}")
                if nb == 0:
                    for x in post: A(x)
        for n in range(8): step(n, vr(vQ + 4 * n, 4))
        A(f"""
        s_waitcnt vmcnt(0)
        v_mov_b32 v1, 1
        s_mov_b64 exec, 1
        buffer_store_dword v1, v{vFOWN}, {sr(sWS)}, 0 offen sc1
        s_mov_b64 exec, -1
        v_and_b32 v{vCNT}, 0xff, v{vCNT}
        v_cmp_ne_u32 vcc, 0, v{vCNT}
        s_barrier
        s_cbranch_vccz L_cnt_ok
        v_mov_b32 v2, 0
        """)
        self.spin("L_cnt", 2, sDBG, "v_and_b32 v1, 0xff, v1\nv_cmp_ne_u32 vcc, 0, v1")
        A("L_cnt_ok:")
        self.stamp()
        self.spin("L_p1", vF1P, sWS, "v_cmp_ne_u32 vcc, 1, v1")
        self.stamp()
        def oload(i, ks):
            pre = []
            if ks == 0:
                pre = [f"s_add_u32 s{sT0}, s{sJ}, {i}", f"s_and_b32 s{sT0}, s{sT0}, 7", f"s_lshl_b32 s{sT0}, s{sT0}, 15",
                       f"s_add_u32 s{sT0}, s{sT0}, s{sOB}", f"s_add_u32 s{sT1}, s{sT0}, 4096"]
            return pre + [f"buffer_load_dwordx4 {ar(32*(i-1)+4*ks,4)}, v{vL16}, {sr(sWS)}, s{sT0 if ks < 4 else sT1} offen offset:{1024*(ks%4)} sc1"]
        for i in (1, 2):
            for ks in range(8):
                for x in oload(i, ks): A(x)
        for i in range(1, 8):
            for ks in range(8):
                n = 8 * i + ks
                younger = (7 - ks) + (8 if i < 7 else 0) + (ks if i < 6 else 0)
                step(n, ar(32 * (i - 1) + 4 * ks, 4), pre=[f"s_waitcnt vmcnt({younger})"], post=oload(i + 2, ks) if i < 6 else [])
        self.stamp()
        A(f"s_lshl_b32 s{sD}, s{sG}, 11\ns_add_u32 s{sD}, s{sD}, s{sPBs}")
        for v in (1, 2, 3):
            A(f"s_xor_b32 s{sT0}, s{sG}, {v}\ns_lshl_b32 s{sT0}, s{sT0}, 13\ns_add_u32 s{sN0+v-1}, s{sT0}, s{sD}")
        A("s_nop 1")
        for v in (1, 2, 3):
            for k in range(2):
                A(f"buffer_store_dwordx4 {vr(vY+8*v+4*k,4)}, v{vL16}, {sr(sWS)}, s{sN0+v-1} offen offset:{1024*k} sc1")
        A(f"s_lshl_b32 s{sD}, s{sG}, 13\ns_add_u32 s{sD}, s{sD}, s{sPBs}")
        for v in (1, 2, 3):
            A(f"s_xor_b32 s{sT0}, s{sG}, {v}\ns_lshl_b32 s{sT0}, s{sT0}, 11\ns_add_u32 s{sN0+v-1}, s{sT0}, s{sD}")
        A(f"""
        v_mov_b32 v1, 1
        s_waitcnt vmcnt(0)
        s_mov_b64 exec, 2
        buffer_store_dword v1, v{vFOWN}, {sr(sWS)}, 0 offen sc1
        s_mov_b64 exec, -1
        """)
        self.stamp()
        self.spin("L_p2", vF2P, sWS, "v_cmp_ne_u32 vcc, 1, v1")
        self.stamp()
        for v in (1, 2, 3):
            for k in range(2):
                A(f"buffer_load_dwordx4 {vr(vY+8*v+4*k,4)}, v{vL16}, {sr(sWS)}, s{sN0+v-1} offen offset:{1024*k} sc1")
        for v in (1, 2, 3):
            A(f"s_waitcnt vmcnt({2*(3-v)})")
            for i in range(8): A(f"v_add_f32 v{vY+i}, v{vY+i}, v{vY+8*v+i}")
        for i in range(4): A(f"v_cvt_pk_bf16_f32 v{vP+i}, v{vY+2*i}, v{vY+2*i+1}")
        A(f"""
        s_nop 1
        v_permlane32_swap_b32 v{vP}, v{vP+2}
        v_permlane32_swap_b32 v{vP+1}, v{vP+3}
        buffer_store_dwordx4 {vr(vP,4)}, v{vOUTA}, {sr(sOUT)}, 0 offen
        """)
        if self.stamps:
            A("s_waitcnt vmcnt(0)")
            self.stamp()
            A(f"""
            s_waitcnt lgkmcnt(0)
            s_cmp_lg_u32 s{sW}, 0
            s_cbranch_scc1 L_end
            s_add_u32 s{sX}, s18, {STAMP_OFF}
            s_addc_u32 s{sX+1}, s19, 0
            s_mov_b32 s{sX+2}, 0x100000
            s_lshl_b32 s{sT0}, s2, 8
            v_mov_b32 v4, s{sT0}
            s_mov_b64 exec, 1
            """)
            if self.stamps == "dbg":
                A(f"v_mov_b32 v5, 0\ns_not_b32 s{sT0}, s{STAMP0}\nv_mov_b32 v2, s{sT0}\nbuffer_atomic_umax v2, v5, {sr(sDBG)}, 0 offen offset:4 sc1\ns_nop 1")
                for i in range(self.nst):
                    A(f"v_mov_b32 v2, s{STAMP0+2*i}\nbuffer_atomic_umax v2, v5, {sr(sDBG)}, 0 offen offset:{8+4*i} sc1\ns_nop 1")
            for i in range(self.nst):
                A(f"v_mov_b32 v2, s{STAMP0+2*i}\nv_mov_b32 v3, s{STAMP0+2*i+1}\nbuffer_store_dwordx2 v[2:3], v4, {sr(sX)}, 0 offen offset:{8*i}\ns_nop 1")
        A("L_end:\ns_endpgm")
        self.seg("tail", m)

    def build(self):
        m = self.mark(); self.prologue(); self.seg("pro", m)
        self.qphase(); self.attn_prologue(); self.attn_loop(); self.tail()
        self.loop_extras()
        for S, t in ((vSB, "b"), (vSA, "a"), (vSB, "c")): self.rescale(S, t)
        self.A("CODE_END:\ns_endpgm")
        S = self.segs
        errs = hazard.check(S["pro"] + S["q"] + S["q"] + S["ap"] + S["loop"] + S["loop"] + S["tail"], "main")
        def splice(seq, tag):
            out = []
            for l in seq:
                out.append(l)
                if l.strip() == f"s_cbranch_vccnz L_rs_{tag}": out += S["rs_" + tag]
            return out
        errs += hazard.check(splice(splice(S["loop"] + S["loop"], "a"), "b") + splice(S["tail"], "c"), "rare")
        errs += hazard.check(S["loop"] + S["x"] + S["loop"], "extras")
        errs = sorted(set(errs))
        for e in errs: print("HAZARD", e, file=sys.stderr)
        assert self.nst <= 13
        return kernel_file([(KN, 256, 256, 10 * SLOT)], {KN: (self.A.text(), 512, 256, 102)})

if __name__ == "__main__":
    import argparse
    ap = argparse.ArgumentParser()
    ap.add_argument("-o", default="main.s"); ap.add_argument("--stamps", nargs="?", const="ws", default=None)
    ap.add_argument("--kv", default="nt"); ap.add_argument("--dump", default=None); ap.add_argument("-T", type=float, default=8.0)
    ap.add_argument("--nopf", action="store_true")
    a = ap.parse_args()
    g = Gen(a.stamps, a.kv, a.dump, a.T, not a.nopf)
    open(a.o, "w").write(g.build())
    print("stamps:", g.nst)
```

```python
import re
TRANS = ("v_exp_f32", "v_log_f32", "v_rcp_f32", "v_rsq_f32", "v_sqrt_f32")
def regs(op):
    op = op.strip()
    neg = op.lstrip("-")
    m = re.fullmatch(r"([vas])\[(\d+):(\d+)\]", neg)
    if m: return [(m.group(1), i) for i in range(int(m.group(2)), int(m.group(3)) + 1)]
    m = re.fullmatch(r"([vas])(\d+)", neg)
    if m: return [(m.group(1), int(m.group(2)))]
    if neg in ("vcc", "vcc_lo", "vcc_hi"): return [("s", "vcc")]
    if neg == "m0": return [("s", "m0")]
    if neg in ("exec", "exec_lo", "exec_hi"): return [("s", "exec")]
    return []
def parse(line):
    line = line.split(";")[0].strip()
    if not line or line.endswith(":"): return None
    p = line.split(None, 1)
    mn = p[0]
    ops = []
    if len(p) > 1:
        ops = [o.strip() for o in p[1].split(",")]
        if ops:
            last = ops[-1].split()
            ops[-1] = last[0] if last else ""
    mods = line
    d = dict(mn=mn, ops=ops, text=line, w=[], r=[], kind="other")
    R = lambda i: regs(ops[i]) if i < len(ops) else []
    if mn.startswith("v_mfma"):
        d.update(kind="mfma", w=R(0), a=R(1), b=R(2), c=R(3)); d["r"] = d["a"] + d["b"] + d["c"]
    elif mn.startswith("v_cmp"):
        d.update(kind="valu", w=R(0), r=R(1) + R(2))
    elif mn.startswith("v_permlane"):
        d.update(kind="valu", w=R(0) + R(1), r=R(0) + R(1))
    elif mn.startswith("v_readfirstlane") or mn.startswith("v_readlane"):
        d.update(kind="valu", w=R(0), r=R(1))
    elif mn.startswith("v_"):
        r = sum((R(i) for i in range(1, len(ops))), [])
        if mn.startswith("v_fmac") or mn.startswith("v_dot2c"): r += R(0)
        if mn.startswith("v_cndmask") and len(ops) == 3: r += [("s", "vcc")]
        d.update(kind="valu", w=R(0), r=r)
    elif mn.startswith("ds_read"):
        d.update(kind="ds", w=R(0), r=R(1))
    elif mn.startswith("ds_write"):
        d.update(kind="ds", r=R(0) + R(1))
    elif mn.startswith("buffer_load") or mn.startswith("global_load"):
        if " lds" in mods:
            d.update(kind="vmem", r=R(0) + R(1) + R(2) + [("s", "m0")], lds=True)
        else:
            d.update(kind="vmem", w=R(0), r=R(1) + R(2) + R(3))
    elif mn.startswith("buffer_store") or mn.startswith("buffer_atomic"):
        d.update(kind="vmem", r=R(0) + R(1) + R(2) + R(3), data=R(0), store=True)
    elif mn.startswith("s_load") or mn.startswith("s_memrealtime") or mn.startswith("s_memtime"):
        d.update(kind="smem", w=R(0), r=R(1))
    elif mn.startswith("s_cmp") or mn.startswith("s_cbranch") or mn in ("s_barrier", "s_waitcnt", "s_nop", "s_branch", "s_endpgm", "s_sleep", "s_setprio"):
        d.update(kind="salu", r=sum((R(i) for i in range(len(ops))), []))
    elif mn.startswith("s_"):
        d.update(kind="salu", w=R(0), r=sum((R(i) for i in range(1, len(ops))), []))
    return d
def ws(d):
    if d["mn"] == "s_nop": return int(d["ops"][0]) + 1
    return 1
def check(lines, name=""):
    ins = [x for x in (parse(l) for l in lines) if x]
    errs = []
    pos = [0]
    for d in ins: pos.append(pos[-1] + ws(d))
    def dist(i, j): return pos[j] - pos[i + 1]
    W = 40
    for j, c in enumerate(ins):
        for i in range(max(0, j - W), j):
            p = ins[i]; n = dist(i, j)
            if n >= 20: continue
            pw = set(p["w"]); need = 0; why = ""
            vw = {x for x in pw if x[0] in "va"}; sw = {x for x in pw if x[0] == "s"}
            if p["kind"] == "mfma":
                big = "32x32" in p["mn"]
                n1, n2, n3 = (12, 10, 7) if big else (8, 6, 3)
                if c["kind"] == "mfma":
                    if pw & set(c["a"] + c["b"]): need, why = n1, "mfma D->A/B"
                    elif pw & set(c["c"]) and p["w"] != c["c"]: need, why = n2, "mfma D->C overlap"
                    elif pw & set(c["w"]) and not (p["w"] == c["c"]): need, why = n1, "mfma D WAW"
                elif c["kind"] in ("valu", "ds", "vmem") and pw & set(c["r"] + c["w"]): need, why = n1, "mfma D->valu/mem"
                if c["kind"] == "valu" and set(p["c"]) & set(c["w"]) and need < n3: need, why = n3, "mfma C WAR"
            if p["kind"] == "valu":
                if c["kind"] == "mfma" and vw & set(c["r"]): need, why = 2, "valu->mfma"
                if c["kind"] == "valu":
                    if p["mn"].startswith(TRANS) and not c["mn"].startswith(TRANS) and vw & set(c["r"]): need, why = max(need, 1), "trans->valu"
                    if c["mn"].startswith("v_permlane") and vw & set(c["r"]): need, why = 2, "valu->permlane"
                    if c["mn"].startswith(("v_readfirstlane", "v_readlane")) and vw & set(c["r"]): need, why = max(need, 1), "valu->readlane"
                    if "_dpp" in c["mn"] and vw & set(c["r"]): need, why = 2, "valu->dpp"
                    if sw & set(c["r"]): need, why = 2, "valu sgpr->valu"
                if c["kind"] == "vmem" and sw & set(c["r"]): need, why = 5, "valu sgpr->vmem"
            if p["kind"] == "salu" and ("s", "m0") in pw and c.get("lds"): need, why = 1, "m0->lds dma"
            if p.get("store") and len(p["data"]) >= 3 and c["kind"] == "valu" and set(p["data"]) & set(c["w"]): need, why = 2, "store data WAR"
            if n < need: errs.append(f"{name}: {why}: need {need} have {n}: [{p['text']}] -> [{c['text']}]")
    lq = []; vq = []
    for c in ins:
        if c["mn"] == "s_waitcnt":
            m = re.search(r"lgkmcnt\((\d+)\)", c["text"])
            if m:
                n = int(m.group(1))
                if any(k == "smem" for k, _ in lq):
                    if n == 0: lq = []
                    else:
                        ds = [x for x in lq if x[0] == "ds"]; sm = [x for x in lq if x[0] == "smem"]
                        lq = sm + ds[max(0, len(ds) - n):]
                else: lq = lq[max(0, len(lq) - n):]
            m = re.search(r"vmcnt\((\d+)\)", c["text"])
            if m:
                n = int(m.group(1)); vq = vq[max(0, len(vq) - n):]
            continue
        use = set(c["r"]) | set(c["w"])
        for k, q in (("lgkm", lq), ("vm", vq)):
            for _, w in q:
                if use & set(w): errs.append(f"{name}: {k} pending dest used: [{c['text']}]")
        if c["kind"] == "ds": lq.append(("ds", c["w"]))
        if c["kind"] == "smem": lq.append(("smem", c["w"]))
        if c["kind"] == "vmem": vq.append(("vm", c["w"]))
        if len([x for x in lq if x[0] == "ds"]) > 15 and c["kind"] == "ds": pass
    return errs
```

```python
import sys, math, struct, re
from asmlib import *
import hazard

STAMP_OFF = 240 << 20
SLOT = 16384
PB = 8 << 20
F1 = 16 << 20
F2 = F1 + 16384
EPOCH = F2 + 32768
WS_SIZE = EPOCH + 128
SCALE = math.log2(math.e) / math.sqrt(128.0)
def f2u(x): return struct.unpack("<I", struct.pack("<f", x))[0]

sX, sWQ, sK, sV, sWO, sWS, sOUT, sDBG = 20, 24, 28, 32, 36, 40, 44, 48
sW, sB, sH, sJ, sG, sW4K, sCC, sT = 52, 53, 54, 55, 56, 57, 58, 59
sT0, sT1 = 60, 61
sRET = 62
sKSO, sVSO = 64, 65
sN0 = 66
sD = 69
sSC = 70
sXM = 71
sAT = 72
sOB = 73
sPBs = 74
sSPIN = 75
sSOA, sSOB = 4, 5
sRDY, sPEND = 7, 8
sSL = 9
sO0 = 12
STAMP0 = 76
vKR, vVR, vKD, vVD, vXD, vWD, vOD, vORB, vOR = 8, 12, 20, 24, 28, 32, 36, 40, 44
vMX0, vMX1 = 48, 49
vCNT, vF1P, vF2P, vL16, vOUTA, vFOWN = 50, 51, 52, 53, 54, 55
vONE = 56; vT = 60
vTAG = 184
vPOLL = 186
vO, vSA, vSB, vCI, vL, vP, vQ, vY = 64, 128, 144, 160, 168, 176, 192, 224
vWR, vXR = 128, 144
def qacc(db, q): return (160 + 8 * db if db < 3 else 148 if db == 3 else 192 + 8 * db) + 4 * q
aK, aV = 0, 32
XSL, WSL = (1, 2, 6, 8), (4, 5, 7, 9)
def vr(b, n=4): return f"v[{b}:{b+n-1}]"
def ar(b, n=4): return f"a[{b}:{b+n-1}]"
def sr(b, n=4): return f"s[{b}:{b+n-1}]"
MF = "v_mfma_f32_16x16x32_bf16"

def autowait(lines, slack=20):
    out = []; q = []; n = 0
    for l in lines:
        d = hazard.parse(l)
        if d is None: out.append(l); continue
        if d["mn"] == "s_waitcnt":
            m = re.search(r"lgkmcnt\((\d+)\)", d["text"])
            if m: q = q[max(0, len(q) - int(m.group(1))):]
        else:
            use = set(d["r"]) | set(d["w"])
            need = max([i for i, (w, _) in enumerate(q) if use & w], default=-1)
            if need >= 0:
                while need + 1 < len(q) and n - q[need + 1][1] >= slack: need += 1
                left = len(q) - 1 - need
                assert left <= 15
                prev = out[-1].strip()
                if prev.startswith("s_waitcnt vmcnt") and "lgkm" not in prev: out[-1] = out[-1] + f" lgkmcnt({left})"
                else: out.append(f"    s_waitcnt lgkmcnt({left})")
                q = q[need + 1:]
            if d["kind"] == "ds": q.append((set(d["w"]), n))
        out.append(l); n += 1
    return out

class Gen:
    def __init__(self, **kw):
        self.A = Asm(); self.nst = 0; self.segs = {}
        self.stamps = None; self.kv = "nt"; self.xw = "nt"; self.wo = "nt"; self.dump = None; self.T = 8.0
        self.pf = True; self.nodma = False; self.sleep = 4; self.one = True; self.wopf = True; self.dpos = 1
        self.kvsched = {5: ["K0", "V0"], 6: ["K1"], 7: ["V1"], 8: ["K2"], 9: ["V2"]}
        self.__dict__.update(kw)
        self.vm = []
    def stamp(self, k):
        sets = {"ws": range(11), "dbg": range(11), "cyc": range(11), "loop": (0, 1, 2, 3, 11, 12, 13, 14, 4, 5, 7, 10), "q": (0, 1, 20, 21, 22, 23, 25, 27, 2, 3, 4, 10)}
        if not self.stamps or k not in sets[self.stamps]: return []
        i = list(sets[self.stamps]).index(k); self.nst = max(self.nst, i + 1)
        return [f"{'s_memtime' if self.stamps == 'cyc' else 's_memrealtime'} s[{STAMP0+2*i}:{STAMP0+2*i+1}]"]
    def mark(self): return len(self.A.l)
    def seg(self, name, a): self.segs[name] = self.A.l[a:]
    def emit(self, l):
        for x in l: self.A(x)
    def weave(self, mf, gaps):
        assert len(mf) == len(gaps)
        for m, g in zip(mf, gaps):
            self.A(m); self.emit(g)
    def younger(self, tag): return len(self.vm) - 1 - max(i for i, t in enumerate(self.vm) if t == tag)

    def dma(self, v, srd, so, flag, n=4):
        return [f"buffer_load_dwordx4 v{v+p}, {sr(srd)}, s{so} offen offset:{1024*p} {flag} lds" for p in range(n)]
    def dma_k(self): return ["s_nop 0"] * 4 if self.nodma else self.dma(vKD, sK, sKSO, self.kv)
    def dma_v(self): return ["s_nop 0"] * 4 if self.nodma else self.dma(vVD, sV, sVSO, self.kv)
    def m0(self, slot): return f"s_add_u32 m0, s{sW4K}, {slot*SLOT}"
    def next_chunk(self):
        return [f"s_lshl_b32 s{sSOA}, s{sCC}, 7", f"s_lshl_b32 s{sSOB}, s{sCC}, 19",
                f"s_add_u32 s{sCC}, s{sCC}, 1", f"s_and_b32 s{sCC}, s{sCC}, 7"]

    def prologue(self):
        A = self.A
        self.emit(self.stamp(0))
        A(f"""
        s_cmp_ge_u32 s2, 256
        s_cbranch_scc1 L_end
        s_load_dwordx16 s[4:19], s[0:1], 0
        v_lshrrev_b32 v1, 6, v0
        v_and_b32 v0, 63, v0
        s_and_b32 s{sT0}, s2, 7
        v_readfirstlane_b32 s{sW}, v1
        """)
        if self.pf:
            A(f"""
            s_getpc_b64 s[{sRET}:{sRET+1}]
            L_pcref:
            v_lshlrev_b32 v{vT}, 13, v1
            v_lshl_add_u32 v{vT}, v0, 7, v{vT}
            v_min_u32 v{vT}, L_hot_end - L_pcref, v{vT}
            global_load_dword v{vMX0}, v{vT}, s[{sRET}:{sRET+1}]
            """)
        A(f"""
        s_lshr_b32 s{sG}, s{sT0}, 1
        s_and_b32 s{sT0}, s{sT0}, 1
        s_lshr_b32 s{sAT}, s2, 3
        s_and_b32 s{sD}, s{sAT}, 3
        s_lshr_b32 s{sJ}, s{sAT}, 2
        s_lshl_b32 s{sB}, s{sT0}, 2
        s_add_u32 s{sB}, s{sB}, s{sD}
        s_lshl_b32 s{sH}, s{sG}, 3
        s_add_u32 s{sH}, s{sH}, s{sJ}
        s_lshl_b32 s{sT1}, s{sD}, 1
        s_add_u32 s{sCC}, s{sJ}, s{sT1}
        s_and_b32 s{sCC}, s{sCC}, 7
        s_lshl_b32 s{sW4K}, s{sW}, 12
        v_lshrrev_b32 v2, 4, v0
        v_and_b32 v3, 15, v0
        v_lshrrev_b32 v6, 3, v0
        v_and_b32 v7, 7, v0
        s_lshl_b32 s{sT0}, s{sW}, 5
        v_add_u32 v5, s{sT0}, v6
        v_xor_b32 v1, v2, v7
        v_lshlrev_b32 v1, 4, v1
        v_lshl_add_u32 v{vXD}, v5, 10, v1
        v_xor_b32 v1, 64, v1
        v_lshl_add_u32 v{vXD+1}, v5, 10, v1
        s_cmp_eq_u32 s{sW}, 3
        s_cselect_b32 s{sT0}, 16384, 0
        s_sub_u32 s{sT0}, 14336, s{sT0}
        v_add_u32 v{vXD+1}, 7168, v{vXD+1}
        v_add_u32 v{vXD+2}, s{sT0}, v{vXD}
        v_add_u32 v{vXD+3}, s{sT0}, v{vXD+1}
        v_lshlrev_b32 v4, 1, v2
        v_xor_b32 v4, v4, v3
        v_lshlrev_b32 v4, 4, v4
        s_lshl_b32 s{sT0}, s{sW}, 4
        v_add_u32 v1, s{sT0}, v2
        v_lshl_add_u32 v{vWD}, v1, 13, v4
        s_mul_i32 s{sT0}, s{sB}, 114688
        s_lshl_b32 s{sT1}, s{sH}, 8
        v_xor_b32 v{vWD+2}, 128, v{vWD}
        v_add_u32 v{vWD+1}, {4*8192-1024}, v{vWD}
        v_add_u32 v{vWD+3}, {3*(4*8192-1024)}, v{vWD+2}
        v_add_u32 v{vWD+2}, {2*(4*8192-1024)}, v{vWD+2}
        s_mov_b32 s{sX+2}, 114688
        s_mov_b32 s{sX+3}, 0x20000
        s_sub_u32 s{sWQ+2}, 0x400000, s{sT1}
        s_mov_b32 s{sWQ+3}, 0x20000
        {self.m0(XSL[0])}
        s_waitcnt lgkmcnt(0)
        s_add_u32 s{sX}, s4, s{sT0}
        s_addc_u32 s{sX+1}, s5, 0
        s_add_u32 s{sWQ}, s10, s{sT1}
        s_addc_u32 s{sWQ+1}, s11, 0
        """)
        def pair(c):
            self.emit(self.next_chunk())
            self.emit(self.dma(vXD, sX, sSOA, self.xw))
            A(self.m0(WSL[c]) + "\ns_nop 0")
            self.emit(self.dma(vWD, sWQ, sSOB, self.xw))
            self.vm += [f"P{c}"] * 8
        pair(0)
        A(self.m0(XSL[1])); pair(1)
        A(f"""
        s_add_u32 s{sOUT}, s14, s{sT0}
        s_addc_u32 s{sOUT+1}, s15, 0
        s_lshl_b32 s{sT0}, s{sB}, 5
        s_add_u32 s{sT0}, s{sT0}, s{sH}
        s_lshl_b32 s{sT0}, s{sT0}, 18
        s_add_u32 s{sK}, s6, s{sT0}
        s_addc_u32 s{sK+1}, s7, 0
        s_mov_b32 s{sK+2}, 0x40000
        s_mov_b32 s{sK+3}, 0x20000
        s_add_u32 s{sV}, s8, s{sT0}
        s_addc_u32 s{sV+1}, s9, 0
        s_mov_b32 s{sV+2}, 0x40000
        s_mov_b32 s{sV+3}, 0x20000
        s_mov_b32 s{sOUT+2}, 114688
        s_mov_b32 s{sOUT+3}, 0x20000
        s_lshl_b32 s{sT0}, s{sG}, 20
        s_lshl_b32 s{sT1}, s{sJ}, 7
        s_add_u32 s{sT0}, s{sT0}, s{sT1}
        s_add_u32 s{sWO}, s12, s{sT0}
        s_addc_u32 s{sWO+1}, s13, 0
        s_sub_u32 s{sWO+2}, 0x400000, s{sT0}
        s_mov_b32 s{sWO+3}, 0x20000
        s_mov_b32 s{sWS}, s18
        s_mov_b32 s{sWS+1}, s19
        s_mov_b32 s{sWS+2}, {WS_SIZE}
        s_mov_b32 s{sWS+3}, 0x20000
        s_mov_b32 s{sDBG}, s16
        s_mov_b32 s{sDBG+1}, s17
        s_mov_b32 s{sDBG+2}, 256
        s_mov_b32 s{sDBG+3}, 0x20000
        s_mov_b32 s{sSC}, {f2u(SCALE):#x}
        s_lshl_b32 s{sD}, s{sAT}, 2
        s_add_u32 s{sD}, s{sD}, s{sW}
        s_lshl_b32 s{sD}, s{sD}, 13
        s_sub_u32 s{sD}, s{sD}, s{sT1}
        v_lshl_add_u32 v{vMX1}, v0, 7, s{sD}
        s_mov_b32 s{sXM}, {(1<<0)|(1<<3)|(1<<6)|(1<<9)|(7<<12):#x}
        s_lshl_b32 s{sT1}, s{sJ}, 2
        s_lshr_b32 s{sT1}, 0x52419876, s{sT1}
        s_and_b32 s{sT1}, s{sT1}, 15
        s_lshl_b32 s{sSL}, s{sT1}, 14
        """)
        A(f"""
        s_lshl_b32 s{sT0}, s{sB}, 2
        s_add_u32 s{sT0}, s{sT0}, s{sG}
        s_lshl_b32 s{sOB}, s{sT0}, 18
        s_lshl_b32 s{sT1}, s{sW}, 13
        s_add_u32 s{sOB}, s{sOB}, s{sT1}
        s_lshl_b32 s{sT0}, s{sT0}, 2
        s_add_u32 s{sT0}, s{sT0}, s{sW}
        s_lshl_b32 s{sT0}, s{sT0}, 7
        s_add_u32 s{sT0}, s{sT0}, {F1}
        v_add_u32 v{vT}, s{sJ}, v0
        v_and_b32 v{vT}, 7, v{vT}
        v_lshl_add_u32 v{vF1P}, v{vT}, 3, s{sT0}
        s_lshl_b32 s{sT1}, s{sJ}, 3
        s_add_u32 s{sT0}, s{sT0}, s{sT1}
        v_mov_b32 v{vFOWN}, s{sT0}
        s_lshl_b32 s{sT0}, s{sB}, 3
        s_add_u32 s{sT0}, s{sT0}, s{sJ}
        s_lshl_b32 s{sT0}, s{sT0}, 2
        s_add_u32 s{sT0}, s{sT0}, s{sW}
        s_lshl_b32 s{sPBs}, s{sT0}, 15
        s_add_u32 s{sPBs}, s{sPBs}, {PB}
        s_lshl_b32 s{sT0}, s{sT0}, 7
        s_add_u32 s{sT0}, s{sT0}, {F2}
        v_and_b32 v{vT}, 3, v0
        v_lshl_add_u32 v{vF2P}, v{vT}, 3, s{sT0}
        s_lshl_b32 s{sT1}, s{sG}, 3
        s_add_u32 s{sT0}, s{sT0}, s{sT1}
        v_writelane_b32 v{vFOWN}, s{sT0}, 1
        v_mov_b32 v{vCNT}, {EPOCH}
        s_or_b32 s{sAT}, s2, s{sW}
        s_cbranch_scc1 L_noepoch
        buffer_load_dwordx2 {vr(vTAG,2)}, v{vCNT}, {sr(sWS)}, 0 offen sc1
        L_noepoch:
        """)
        A(f"""
        v_lshrrev_b32 v6, 1, v3
        v_xor_b32 v6, v6, v2
        v_lshlrev_b32 v6, 4, v6
        v_lshl_add_u32 v6, v3, 7, v6
        s_add_u32 s{sT0}, s{sW4K}, {XSL[0]*SLOT}
        v_add_u32 v{vXR}, s{sT0}, v6
        v_xor_b32 v{vXR+1}, 64, v{vXR}
        v_add_u32 v{vXR+2}, {(XSL[2]-XSL[0])*SLOT}, v{vXR}
        v_add_u32 v{vXR+3}, {(XSL[2]-XSL[0])*SLOT}, v{vXR+1}
        v_bfe_u32 v{vT}, v0, 2, 2
        v_and_b32 v{vT+1}, 3, v0
        v_and_b32 v6, 1, v2
        v_lshl_add_u32 v6, v6, 2, v{vT}
        v_lshlrev_b32 v6, 5, v6
        v_lshl_add_u32 v6, v{vT+1}, 3, v6
        v_lshl_add_u32 v6, v{vT}, 8, v6
        v_lshl_add_u32 v{vVR}, v2, 10, v6
        v_lshl_add_u32 v6, v2, 11, v6
        v_add_u32 v{vWR}, {WSL[0]*SLOT}, v6
        """)
        for db in range(1, 8): A(f"v_xor_b32 v{vWR+db}, {db*32}, v{vWR}")
        for db in range(8): A(f"v_add_u32 v{vWR+8+db}, {(WSL[2]-WSL[0])*SLOT}, v{vWR+db}")
        A(self.m0(XSL[2])); pair(2)
        self.emit(self.stamp(1))
        late = [f"v_lshl_add_u32 v{vVD}, v1, 8, v4", f"v_xor_b32 v{vVD+1}, 128, v{vVD}", f"v_mov_b32 v{vVD+2}, v{vVD}", f"v_mov_b32 v{vVD+3}, v{vVD+1}"]
        for p in range(4):
            late += [f"v_add_u32 v4, {4*p}, v2", "v_xor_b32 v4, v4, v3", "v_lshlrev_b32 v4, 4, v4", f"v_lshl_add_u32 v{vKD+p}, v1, 8, v4"]
        late += [f"v_add_u32 v{vVR}, {3*SLOT}, v{vVR}"] + [f"v_xor_b32 v{vVR+db}, {db*32}, v{vVR}" for db in range(1, 8)]
        late += ["v_xor_b32 v6, v2, v3", "v_lshlrev_b32 v6, 4, v6", f"v_lshl_add_u32 v{vKR}, v3, 8, v6"]
        late += [f"v_xor_b32 v{vKR+s}, {s*64}, v{vKR}" for s in range(1, 4)]
        late += ["v_lshlrev_b32 v6, 1, v2", "v_xor_b32 v6, v6, v7", "v_lshlrev_b32 v6, 4, v6", f"v_lshl_add_u32 v{vOD}, v5, 10, v6"]
        late += [f"v_add_u32 v{vOD+p}, {p*7168}, v{vOD}" for p in range(1, 4)]
        late += ["v_and_b32 v6, 1, v2", "v_lshlrev_b32 v6, 1, v6", f"v_lshrrev_b32 v4, 1, v{vT}", "v_or_b32 v6, v6, v4", f"v_xor_b32 v6, s{sG}, v6",
                 "v_lshlrev_b32 v6, 5, v6", f"v_lshl_add_u32 v6, v{vT+1}, 3, v6", f"v_lshl_add_u32 v6, v{vT}, 7, v6", f"v_lshl_add_u32 v{vORB}, v2, 9, v6"]
        late += [f"v_xor_b32 v{vORB+n}, {n*32}, v{vORB}" for n in range(1, 4)]
        late += ["v_and_b32 v6, 1, v2", "v_lshl_add_u32 v6, v6, 4, v3", "v_lshlrev_b32 v6, 10, v6", f"v_lshl_add_u32 v6, s{sW}, 15, v6",
                 f"v_lshl_add_u32 v6, s{sJ}, 7, v6", f"v_lshl_add_u32 v6, s{sG}, 5, v6", "v_lshrrev_b32 v4, 1, v2", f"v_lshl_add_u32 v{vOUTA}, v4, 4, v6",
                 f"v_lshlrev_b32 v{vL16}, 4, v0"]
        late += [f"v_mov_b32 v{vONE+i}, 0x3f803f80" for i in range(4)]
        self.late = late
        if self.one: A(f"s_cmp_eq_u32 s{sW}, 3\ns_cbranch_scc1 L_one")

    def q_reads(self, c, st):
        s, dh = st // 2, st % 2
        hi = (c % 4) // 2
        xo = (XSL[c % 4] - XSL[2 * hi]) * SLOT; wo = (WSL[c % 4] - WSL[2 * hi]) * SLOT
        r = [f"ds_read_b128 {ar(64+8*s+4*q)}, v{vXR+2*hi+s} offset:{xo+2048*q}" for q in range(self.NQ)] if dh == 0 else []
        for d in range(4):
            for a in range(2):
                r.append(f"ds_read_b64_tr_b16 {ar(16*st+4*d+2*a,2)}, v{vWR+8*hi+4*dh+d} offset:{wo+s*8192+a*1024}")
        return r
    def q_mfs(self, st, first=False):
        s, dh = st // 2, st % 2
        return [f"{MF} {vr(qacc(4*dh+d,q))}, {ar(16*st+4*d)}, {ar(64+8*s+4*q)}, {'0' if first else vr(qacc(4*dh+d,q))}"
                for d in range(4) for q in range(self.NQ)]
    @staticmethod
    def spread(items, n, start=0):
        g = [[] for _ in range(n)]
        k = n - start
        for i, x in enumerate(items): g[start + i * k // max(len(items), 1)].append(x)
        return g
    def qphase(self):
        A = self.A; NQ = self.NQ; G = 4 * NQ
        late = list(self.late) + [f"v_mov_b32 v{vO+8*db+4*q+i}, 0" for q in range(NQ) for db in range(8) for i in range(4)]
        for c in range(8):
            d = []
            if c <= 4:
                nc = self.next_chunk()
                d = [([self.m0(XSL[(c + 3) % 4])] + nc[:2], self.dma(vXD, sX, sSOA, self.xw, 2 * NQ), f"P{c+3}"),
                     ([self.m0(WSL[(c + 3) % 4])] + nc[2:], self.dma(vWD, sWQ, sSOB, self.xw), f"P{c+3}")]
            for it in self.kvsched.get(c, []): d.append(self.kv_item(it))
            bar = [f"s_waitcnt vmcnt({self.younger(f'P{c}')})", "s_barrier"] + self.stamp(20 + c)
            seq = []
            if self.wopf and 1 <= c <= 4:
                if NQ == 2 and c <= 3 + (not self.one):
                    seq.append([f"s_cmp_lg_u32 s{sW}, {c-1}\ns_cbranch_scc1 L_nopf{c}\nbuffer_load_dword v{vMX1}, v{vMX1}, {sr(sWO)}, 0 offen\nL_nopf{c}:"])
                if NQ == 1 and c == 4: seq.append([f"buffer_load_dword v{vMX1}, v{vMX1}, {sr(sWO)}, 0 offen"])
            for su, ld, tag in d:
                seq += [su] + [[x] for x in ld]; self.vm += [tag] * len(ld)
            if c == 0:
                self.emit(bar + self.q_reads(0, 0) + self.q_reads(0, 1))
                order = ((0, 2), (1, 3))
            else:
                A("s_waitcnt lgkmcnt(0)")
                order = ((2, 0), (3, 1), (0, 2), (1, 3))
            ng = G * len(order)
            dg = self.spread(seq, ng, 1)
            for k, (sm, srd) in enumerate(order):
                rd = self.q_reads(c, srd)
                first = 1 if (sm == 2 and NQ == 2) else 0
                nr = 5 if NQ == 2 else G
                rg = [[]] * first + self.spread(rd, nr) + [[]] * (G - nr - first)
                if sm == 2: rg[0] = bar + rg[0]
                gaps = []
                for g in range(G):
                    x = rg[g] + sum(dg[k * G + g], [])
                    if c >= 1 and (len(x) < 2 or NQ == 1):
                        n = 2 - (len(x) > 0) + (NQ == 1 and c <= 3); x = x + late[:n]; late = late[n:]
                    gaps.append(x)
                self.weave(self.q_mfs(sm, c == 0), gaps)
            if c == 4: assert len(late) <= 32 * NQ, len(late)
        assert not late
        self.emit(self.q_mfs(2) + self.q_mfs(3))
    def kv_item(self, it):
        t = int(it[1:])
        if it[0] == "K": return ([self.m0(t % 3), f"s_mov_b32 s{sKSO}, {t*SLOT}"], self.dma_k(), it)
        return ([self.m0(3 + t % 3), f"s_mov_b32 s{sVSO}, {t*SLOT}"], self.dma_v(), it)

    def kreads(self, slot, half):
        return [f"ds_read_b128 {ar(aK+16*u+4*s)}, v{vKR+s} offset:{slot*SLOT+8192*half+4096*u}" for s in range(4) for u in range(2)]
    def vreads(self, slot, half):
        return [f"ds_read_b64_tr_b16 {ar(aV+4*db+2*a,2)}, v{vVR+db} offset:{slot*SLOT+8192*half+4096*a}" for db in range(8) for a in range(2)]
    def qks(self, S, zero=False):
        return [f"{MF} {vr(S+8*u+4*q)}, {ar(aK+16*u+4*s)}, {vr(vQ+16*q+4*s)}, " + (vr(S + 8 * u + 4 * q) if s else "0" if zero else vr(vCI + 4 * q))
                for s in range(4) for u in range(2) for q in range(self.NQ)]
    def pvs(self):
        r = []
        for q in range(self.NQ):
            r.append(f"{MF} {vr(vL+4*q)}, {vr(vONE)}, {vr(vP+4*q)}, {vr(vL+4*q)}")
            r += [f"{MF} {vr(vO+8*db+4*q)}, {ar(aV+4*db)}, {vr(vP+4*q)}, {vr(vO+8*db+4*q)}" for db in range(8)]
        return r
    def sregs(self, S, q): return [S + 8 * u + 4 * q + i for u in range(2) for i in range(4)]
    def max8(self, S, q, d):
        r = self.sregs(S, q)
        return [f"v_max3_f32 v{d}, v{r[0]}, v{r[1]}, v{r[2]}", f"v_max3_f32 v{d}, v{d}, v{r[3]}, v{r[4]}",
                f"v_max3_f32 v{d}, v{d}, v{r[5]}, v{r[6]}", f"v_max_f32 v{d}, v{d}, v{r[7]}"]
    def check(self, S):
        a = self.max8(S, 0, vMX0)
        if self.NQ == 2:
            b = self.max8(S, 1, vMX1)
            a = [a[0], b[0], a[1], b[1], a[2], b[2], b[3], f"v_max3_f32 v{vMX0}, v{vMX0}, v{self.sregs(S,0)[7]}, v{vMX1}"]
        return a + [f"v_cmp_lt_f32 vcc, {f2u(self.T):#x}, v{vMX0}"]
    def softmax(self, S, q):
        r = self.sregs(S, q)
        e = [f"v_exp_f32 v{x}, v{x}" for x in r]
        c = [f"v_cvt_pk_bf16_f32 v{vP+4*q+k}, v{r[2*k]}, v{r[2*k+1]}" for k in range(4)]
        return e, c
    def sec_P(self, Sdone, Schk, k, v, dma, tag, bar=True):
        A = self.A; NQ = self.NQ
        A("s_waitcnt lgkmcnt(0)")
        b = ["s_waitcnt vmcnt(12)", "s_barrier"] if bar else []
        k = [[x] for x in k] if k else [[]] * 8
        d = [[x] for x in dma] if dma else [[]] * 5
        x = self.check(Schk)
        if NQ == 2:
            f, c = self.softmax(Sdone, 1)
            g = [b + k[0] + c[1:2], d[0] + f[4:5], k[1] + k[2], f[5:6], k[3] + c[2:3], f[6:7], f[7:8], k[4] + c[3:4],
                 k[5] + x[0:1], k[6] + x[1:2], k[7] + x[2:3], v[0:1] + x[3:4], v[1:2] + d[1] + x[4:5], v[2:3] + x[5:6],
                 v[3:4] + x[6:7], v[4:5] + x[7:8], v[5:6] + x[8:9], v[6:8]]
        else:
            g = [b + k[0], k[1] + d[0] + v[0:2], k[2] + v[2:4], k[3] + d[1] + v[4:6], k[4] + v[6:8] + x[0:1], k[5] + x[1:2],
                 k[6] + x[2:3], k[7] + x[3:4], x[4:5]]
        self.weave(self.pvs(), g)
        A(f"s_cbranch_vccnz L_rs_{tag}_{NQ}\nL_rsb_{tag}_{NQ}:")

    def sec_Q(self, Snew, S, v, dma, tail=(), first=False):
        NQ = self.NQ
        e, c = self.softmax(S, 0)
        d = [[x] for x in dma] if dma else [[]] * 3
        t = list(tail) + [[]] * 2
        v = v[-8:]
        if NQ == 2:
            f, cc = self.softmax(S, 1)
            g = [e[0:1], e[1:2], v[0:2], e[2:3], e[3:4], v[2:4] + c[0:1], e[4:5], e[5:6], v[4:6] + c[1:2], e[6:7], e[7:8],
                 v[6:8] + c[2:3], f[0:1] + c[3:4], d[0] + f[1:2], d[1] + t[0] + f[2:3], d[2] + t[1] + f[3:4] + cc[0:1]]
            if self.dpos == 1:
                g[0] = d[0] + g[0]; g[6] = d[1] + g[6]; g[13] = d[2] + f[1:2]; g[14] = f[2:3]
                g[15] = t[0] + t[1] + f[3:4] + cc[0:1]
        else:
            g = [v[0:2] + e[0:2], v[2:4] + e[2:3] + c[0:1], v[4:6] + e[3:5], v[6:8] + c[1:2] + e[5:6], d[0] + e[6:7] + c[2:3],
                 d[1] + e[7:8], d[2] + t[0] + c[3:4], t[1] + ["s_nop 0"]]
        self.weave(self.qks(Snew), g)

    def allmax(self, regs):
        r = []
        for op in ("v_permlane32_swap_b32", "v_permlane16_swap_b32"):
            r += [f"v_mov_b32 v{vT+i}, v{x}" for i, x in enumerate(regs)] + ["s_nop 1"]
            r += [f"{op} v{x}, v{vT+i}" for i, x in enumerate(regs)]
            r += [f"v_max_f32 v{x}, v{x}, v{vT+i}" for i, x in enumerate(regs)]
        return r
    def rescale(self):
        A = self.A; NQ = self.NQ
        for tag in range(7): A(f"L_rs_{tag}_{NQ}:\ns_mov_b32 s{sT0}, {tag}\ns_branch L_rs{'BA'[tag%2]}_{NQ}")
        for S, n, tags in ((vSA, "A", [1, 3, 5]), (vSB, "B", [0, 2, 4, 6])):
            m = self.mark()
            A(f"L_rs{n}_{NQ}:")
            mx = [vMX0, vMX1][:NQ]
            for q in range(NQ): self.emit(self.max8(S, q, mx[q]))
            self.emit(self.allmax(mx))
            for q in range(NQ): A(f"v_max_f32 v{mx[q]}, 0, v{mx[q]}\nv_sub_f32 v{vT+q}, 0, v{mx[q]}\nv_exp_f32 v{vT+q}, v{vT+q}")
            for q in range(NQ):
                for x in self.sregs(S, q) + [vCI + 4 * q + i for i in range(4)]: A(f"v_sub_f32 v{x}, v{x}, v{mx[q]}")
            for q in range(NQ):
                for x in [vL + 4 * q + i for i in range(4)] + [vO + 8 * db + 4 * q + i for db in range(8) for i in range(4)]:
                    A(f"v_mul_f32 v{x}, v{x}, v{vT+q}")
            self.seg(f"rs{n}{NQ}", m)
            for t in tags[:-1]: A(f"s_cmp_eq_u32 s{sT0}, {t}\ns_cbranch_scc1 L_rsb_{t}_{NQ}")
            A(f"s_nop 0\ns_branch L_rsb_{tags[-1]}_{NQ}")

    def attn_prologue(self):
        A = self.A; NQ = self.NQ
        self.emit(self.stamp(2))
        A(f"s_waitcnt vmcnt({self.younger('K0')})\ns_barrier")
        self.emit(self.kreads(0, 0))
        for it in self.kvsched.get(8, []):
            su, ld, tag = self.kv_item(it); self.emit(su + ld); self.vm += [tag] * 4
        qk = self.qks(vSA, True); k1 = self.kreads(0, 1); per = 2 * NQ
        for s in range(5):
            fin = []
            if s < 4:
                for q in range(NQ):
                    src = [qacc(2 * s + h, q) + i for h in range(2) for i in range(4)]
                    fin += [f"v_mul_f32 v{x}, s{sSC}, v{x}" for x in src]
                    fin += [f"v_cvt_pk_bf16_f32 v{vQ+16*q+4*s+k}, v{src[2*k]}, v{src[2*k+1]}" for k in range(4)]
                for op in ("v_permlane32_swap_b32", "v_permlane16_swap_b32"):
                    fin += ["s_nop 1" if NQ == 1 or op[10] == "3" else "s_nop 0"]
                    fin += [f"{op} v{vQ+16*q+4*s+k}, v{vQ+16*q+4*s+2+k}" for q in range(NQ) for k in range(2)]
            else:
                if self.dump == "q": self.dump_regs(vQ)
                fin = [f"v_mov_b32 v{vL+i}, 0" for i in range(4 * NQ)]
            if s == 0: self.emit(fin); continue
            g = self.spread(fin, per)
            if NQ == 1: A("s_nop 0")
            A("s_nop 0")
            for u in range(2): g[u * NQ + NQ - 1].insert(0, k1[2 * (s - 1) + u])
            self.weave(qk[per * (s - 1):per * s], g)
        A(f"s_waitcnt vmcnt({self.younger('V0')})\ns_barrier")
        su, ld = [], []
        for it in self.kvsched.get(9, []):
            su, ld, tag = self.kv_item(it); self.vm += [tag] * 4
        self.emit(su + self.vreads(0, 0)[:8] + ld)
        mx = [vMX0, vMX1][:NQ]
        for q in range(NQ): self.emit(self.max8(vSA, q, mx[q]))
        self.emit(self.allmax(mx))
        for q in range(NQ):
            for i in range(4): A(f"v_sub_f32 v{vCI+4*q+i}, 0, v{mx[q]}")
        for q in range(NQ):
            for x in self.sregs(vSA, q): A(f"v_sub_f32 v{x}, v{x}, v{mx[q]}")
        self.sec_Q(vSB, vSA, self.vreads(0, 0), None)
        A(f"s_mov_b32 s{sT}, 0\ns_mov_b32 s{sKSO}, {3*SLOT}\ns_mov_b32 s{sVSO}, {3*SLOT}")
        assert self.younger("K1") == 12
        self.emit(self.stamp(3))

    def attn_loop(self):
        A = self.A; NQ = self.NQ
        A(f"L_a_{NQ}:")
        for r in range(3):
            dk = self.dma_k(); dv = self.dma_v()
            s0, s1 = r, (r + 1) % 3
            self.sec_P(vSA, vSB, self.kreads(s1, 0), self.vreads(s0, 1), [self.m0(s0)] + dk[:1], 2 * r)
            self.sec_Q(vSA, vSB, self.vreads(s0, 1), dk[1:], [[], [f"s_add_u32 s{sKSO}, s{sKSO}, {SLOT}"]])
            self.sec_P(vSB, vSA, self.kreads(s1, 1), self.vreads(s1, 0), [self.m0(3 + s0)] + dv[:1], 2 * r + 1)
            self.sec_Q(vSB, vSA, self.vreads(s1, 0), dv[1:], [[], [f"s_add_u32 s{sVSO}, s{sVSO}, {SLOT}", f"s_bitcmp1_b32 s{sXM}, s{sT}"]])
            A(f"s_cbranch_scc1 L_xt{r}_{NQ}\nL_xb{r}_{NQ}:\ns_add_u32 s{sT}, s{sT}, 1")
        if self.stamps == "loop":
            for k in range(1, 5):
                A(f"s_cmp_eq_u32 s{sT}, {3*k}\ns_cbranch_scc0 L_ls{k}_{NQ}"); self.emit(self.stamp(10 + k)); A(f"L_ls{k}_{NQ}:")
        A(f"s_cmp_lt_u32 s{sT}, 15\ns_cbranch_scc1 L_a_{NQ}")

    def loop_extras(self):
        A = self.A
        m = self.mark()
        A(f"""
        L_x:
        s_cmp_ge_u32 s{sT}, 12
        s_cbranch_scc1 L_x_sw
        s_or_b32 s{sT0}, s{sT}, s{sAT}
        s_cbranch_scc1 L_x_notag
        s_mov_b32 s{sT0}, 0x9e3779b9
        v_add_co_u32 v{vTAG}, vcc, 0x7f4a7c15, v{vTAG}
        v_mov_b32 v1, s{sT0}
        v_mov_b32 v2, 0
        v_addc_co_u32 v{vTAG+1}, vcc, v1, v{vTAG+1}, vcc
        v_or_b32 v{vTAG}, 1, v{vTAG}
        v_or_b32 v{vTAG+1}, 1, v{vTAG+1}
        s_mov_b64 exec, 1
        buffer_store_dwordx2 {vr(vTAG,2)}, v2, {sr(sDBG)}, 0 offen sc1
        buffer_store_dwordx2 {vr(vTAG,2)}, v{vCNT}, {sr(sWS)}, 0 offen sc1
        s_mov_b64 exec, -1
        L_x_notag:
        s_mul_i32 s{sT0}, s{sT}, 43
        s_lshr_b32 s{sT0}, s{sT0}, 7
        s_lshl_b32 s{sT1}, s{sT0}, 17
        s_lshl_b32 s{sT0}, s{sT0}, 14
        s_add_u32 s{sT0}, s{sT0}, {6*SLOT}
        s_add_u32 m0, s{sT0}, s{sW4K}
        s_nop 0
        """)
        self.emit(self.dma(vOD, sWO, sT1, self.wo))
        if self.pf:
            A(f"""
            s_cmp_lg_u32 s{sT}, 9
            s_cbranch_scc1 L_x_ret
            s_getpc_b64 s[{sT0}:{sT1}]
            L_pcref2:
            v_lshlrev_b32 v1, 3, v{vL16}
            v_lshl_add_u32 v1, s{sW}, 13, v1
            v_min_u32 v1, L_tail_end - L_pcref2 - 4, v1
            global_load_dword v{vPOLL}, v1, s[{sT0}:{sT1}]
            """)
        A(f"""
        L_x_ret:
        s_setpc_b64 s[{sRET}:{sRET+1}]
        L_x_sw:
        s_lshl_b32 s{sT0}, s{sT}, 1
        s_add_u32 s{sT0}, s{sT0}, 4
        s_and_b32 s{sKSO}, s{sT0}, 7
        s_lshl_b32 s{sKSO}, s{sKSO}, 17
        s_add_u32 s{sVSO}, s{sKSO}, {1<<17}
        s_cmp_eq_u32 s{sT}, 14
        s_cbranch_scc1 L_x_chk
        s_cmp_lg_u32 s{sT}, 12
        s_cbranch_scc1 L_x_ret
        s_mov_b32 s{sK}, s{sWO}
        s_mov_b32 s{sK+1}, s{sWO+1}
        s_mov_b32 s{sK+2}, s{sWO+2}
        s_mov_b32 s{sV}, s{sWO}
        s_mov_b32 s{sV+1}, s{sWO+1}
        s_mov_b32 s{sV+2}, s{sWO+2}
        """)
        for p in range(4): A(f"v_mov_b32 v{vKD+p}, v{vOD+p}\nv_mov_b32 v{vVD+p}, v{vOD+p}")
        A(f"""
        v_mov_b32 v2, 0
        buffer_load_dwordx2 {vr(vTAG,2)}, v2, {sr(sDBG)}, 0 offen sc1
        s_setpc_b64 s[{sRET}:{sRET+1}]
        L_x_chk:
        v_and_b32 v1, v{vTAG}, v{vTAG+1}
        v_and_b32 v1, 1, v1
        v_cmp_eq_u32 vcc, 0, v1
        s_cbranch_vccz L_x_ret
        v_mov_b32 v2, 0
        """)
        self.spin("L_cnt", 2, sDBG, f"v_and_b32 v1, v{vTAG}, v{vTAG+1}\nv_and_b32 v1, 1, v1\nv_cmp_eq_u32 vcc, 0, v1", vTAG)
        A(f"s_setpc_b64 s[{sRET}:{sRET+1}]")
        self.seg("x", m)

    def dump_regs(self, base):
        A = self.A
        A(f"s_lshl_b32 s{sT0}, s{sJ}, 15\ns_add_u32 s{sT0}, s{sT0}, s{sOB}\ns_add_u32 s{sT1}, s{sT0}, 4096\ns_nop 1")
        for i in range(4 * self.NQ):
            A(f"buffer_store_dwordx4 {vr(base+4*i)}, v{vL16}, {sr(sWS)}, s{sT0 if i < 4 else sT1} offen offset:{1024*(i%4)}")
        A("s_waitcnt vmcnt(0)\ns_endpgm")

    def spin(self, label, vaddr, srd, cmp, dst=vPOLL):
        self.A(f"""
        s_mov_b32 s{sSPIN}, 0
        {label}:
        buffer_load_dwordx2 {vr(dst,2)}, v{vaddr}, {sr(srd)}, 0 offen sc1
        s_add_u32 s{sSPIN}, s{sSPIN}, 1
        s_cmp_gt_u32 s{sSPIN}, 200000
        s_cbranch_scc1 {label}_out
        s_waitcnt vmcnt(0)
        {cmp}
        s_cbranch_vccz {label}_out
        {f"s_sleep {self.sleep}" if self.sleep else ""}
        s_branch {label}
        {label}_out:
        """)

    def select(self, p, block):
        r = [f"s_and_b32 s{sT0}, s{sRDY}, s{sPEND}"]
        if block:
            r[0] += f"\ns_cbranch_scc0 L_sel{p}_{self.NQ}\nL_sel{p}_{self.NQ}_go:"
            self.polls.append(f"{p}_{self.NQ}")
        r += [f"s_ff1_i32_b32 s{sT0}, s{sT0}", f"s_bitset0_b32 s{sPEND}, s{sT0}",
              f"s_add_u32 s{sT0}, s{sT0}, s{sJ}", f"s_and_b32 s{sT0}, s{sT0}, 7", f"s_lshl_b32 s{sT1}, s{sT0}, 15",
              f"s_add_u32 s{sO0}, s{sT1}, s{sOB}", f"s_add_u32 s{sO0+1}, s{sO0}, 4096",
              f"s_lshl_b32 s{sT1}, s{sT0}, 2", f"s_lshr_b32 s{sT1}, 0x52419876, s{sT1}",
              f"s_and_b32 s{sT1}, s{sT1}, 15", f"s_lshl_b32 s{sSL+p%3}, s{sT1}, 14"]
        return r
    def poll_blocks(self):
        for p in self.polls:
            self.A(f"""
            L_sel{p}:
            s_mov_b32 s{sSPIN}, 0
            L_sel{p}_l:
            buffer_load_dwordx2 {vr(vPOLL,2)}, v{vF1P}, {sr(sWS)}, 0 offen sc1
            s_add_u32 s{sSPIN}, s{sSPIN}, 1
            s_waitcnt vmcnt(0)
            v_cmp_eq_u64 vcc, {vr(vTAG,2)}, {vr(vPOLL,2)}
            s_cmp_gt_u32 s{sSPIN}, 200000
            s_cselect_b32 s{sRDY}, -1, vcc_lo
            s_and_b32 s{sT0}, s{sRDY}, s{sPEND}
            s_cbranch_scc1 L_sel{p}_go
            {f"s_sleep {self.sleep}" if self.sleep else ""}
            s_branch L_sel{p}_l
            """)

    def woreads(self, n):
        s, hb, st = (n % 8) // 2, n % 2, n % 4
        return [f"ds_read_b64_tr_b16 {ar(224+8*st+4*k+2*a,2)}, v{vOR+2*hb+k} offset:{s*4096+a*2048}" for k in range(2) for a in range(2)]
    def oload(self, i, k):
        s, q = k // self.NQ, k % self.NQ
        return f"buffer_load_dwordx4 {ar(32*(i-1)+16*q+4*s)}, v{vL16}, {sr(sWS)}, s{sO0+q} offen offset:{1024*s} sc1"
    def ostep(self, n, vm=None, extra=(), reads=True, adv=True):
        NQ = self.NQ; i, s, hb = n // 8, (n % 8) // 2, n % 2
        if vm is not None: self.A(f"s_waitcnt vmcnt({vm})")
        rd = self.woreads(n + 2) if n + 2 < 64 and reads else []
        mf = []
        for k in range(2):
            for q in range(NQ):
                y = vr(vY + 8 * (2 * hb + k) + 4 * q)
                B = vr(vQ + 16 * q + 4 * s) if i == 0 else ar(32 * (i - 1) + 16 * q + 4 * s)
                mf.append(f"{MF} {y}, {ar(224+8*(n%4)+4*k)}, {B}, {'0' if n < 2 else y}")
        g = self.spread(rd, 2 * NQ); x = self.spread(list(extra), 2 * NQ)
        g = [a + b for a, b in zip(g, x)]
        if adv and n % 8 in (4, 5) and n // 8 < 7 and reads:
            g[-1] += [f"v_add_u32 v{vOR+2*hb+k}, s{sSL+(i+1)%3}, v{vORB+2*hb+k}" for k in range(2)]
        self.weave(mf, g)
    PUBLISH1 = ["s_mov_b64 exec, 1", f"buffer_store_dwordx2 {vr(vTAG,2)}, v{vFOWN}, {sr(sWS)}, 0 offen sc1", "s_mov_b64 exec, -1"]

    def tail(self):
        A = self.A; NQ = self.NQ; NL = 4 * NQ
        self.emit(self.stamp(4))
        A(f"buffer_load_dwordx2 {vr(vPOLL,2)}, v{vF1P}, {sr(sWS)}, 0 offen sc1")
        self.sec_P(vSA, vSB, None, self.vreads(0, 1), None, 6, bar=False)
        e, c = self.softmax(vSB, 0)
        self.emit(self.vreads(0, 1)[8:] + e[0:3] + c[0:1] + e[3:5] + c[1:2] + e[5:7] + c[2:3] + e[7:8])
        self.emit([f"s_lshl_b32 s{sT0}, s{sJ}, 15"] + c[3:4] + [f"s_add_u32 s{sT0}, s{sT0}, s{sOB}", f"s_add_u32 s{sT1}, s{sT0}, 4096"])
        def norm(q):
            r = []
            for s in range(4):
                src = [vO + 8 * (2 * s + h) + 4 * q + i for h in range(2) for i in range(4)]
                for k in range(4):
                    r += [f"v_mul_f32 v{x}, v{x}, v{vT+q}" for x in src[2 * k:2 * k + 2]]
                    r.append(f"v_cvt_pk_bf16_f32 v{vQ+16*q+4*s+k}, v{src[2*k]}, v{src[2*k+1]}")
                r.append(f"buffer_store_dwordx4 {vr(vQ+16*q+4*s)}, v{vL16}, {sr(sWS)}, s{sT0+q} offen offset:{1024*s} sc1")
            return r
        oa = [f"v_add_u32 v{vOR+k}, s{sSL}, v{vORB+k}" for k in range(4)]
        n0 = norm(0)
        if NQ == 2:
            f, d = self.softmax(vSB, 1)
            g = self.spread(f[0:3] + d[0:1] + f[3:5] + d[1:2] + f[5:7] + d[2:3] + f[7:8], 7) + [d[3:4] + [f"v_rcp_f32 v{vT}, v{vL}"], oa[:2]]
            g += [oa[2:]] + self.spread(n0[:20], 8)
            self.weave(self.pvs(), g)
            self.emit(n0[20:26] + [f"v_rcp_f32 v{vT+1}, v{vL+4}"] + n0[26:] + norm(1))
        else:
            self.weave(self.pvs(), [[]] * 5 + [oa[:2], oa[2:], ["s_nop 0"], [f"v_rcp_f32 v{vT}, v{vL}", "s_nop 0"]])
            self.emit(n0)
        self.emit(self.stamp(5))
        A(f"""
        s_waitcnt vmcnt({NL})
        v_cmp_eq_u64 vcc, {vr(vTAG,2)}, {vr(vPOLL,2)}
        s_mov_b32 s{sPEND}, 0xfe
        s_barrier
        s_and_b32 s{sRDY}, vcc_lo, 0xfe
        """)
        self.emit(self.woreads(0) + self.woreads(1))
        if self.dump == "o": A("s_waitcnt vmcnt(0)\ns_endpgm")
        A(f"s_bcnt1_i32_b32 s{sT0}, s{sRDY}\ns_cmp_ge_u32 s{sT0}, 2\ns_cbranch_scc0 L_slow_{NQ}\nL_fast_{NQ}:")
        for p in (1, 2):
            self.emit(self.select(p, False))
            for n in range(4): self.ostep(4 * (p - 1) + n, extra=[self.oload(p, NQ * n + q) for q in range(NQ)])
        A(f"s_waitcnt vmcnt({2*NL})")
        self.emit(self.PUBLISH1)
        A(f"L_common_{NQ}:")
        self.emit(self.stamp(6))
        for i in range(1, 8):
            sel = self.select(i + 2, True) if i < 6 else []
            ld = self.spread([self.oload(i + 2, k) for k in range(NL)] if i < 6 else [], 8, 2)
            issued = 0
            for h in range(8):
                vm = None
                if h % 2 == 0: vm = (NL - NQ * (h // 2 + 1)) + (NL if i < 7 else 0) + issued
                self.ostep(8 * i + h, vm, extra=sel[:6] if h == 0 else sel[6:] if h == 1 else ld[h])
                issued += len(ld[h])
        self.emit(self.stamp(7))
        A(f"s_lshl_b32 s{sD}, s{sG}, 11\ns_add_u32 s{sD}, s{sD}, s{sPBs}")
        for v in (1, 2, 3):
            A(f"s_xor_b32 s{sT0}, s{sG}, {v}\ns_lshl_b32 s{sT0}, s{sT0}, 13\ns_add_u32 s{sN0+v-1}, s{sT0}, s{sD}")
        for v in (1, 2, 3):
            for q in range(NQ):
                A(f"buffer_store_dwordx4 {vr(vY+8*v+4*q)}, v{vL16}, {sr(sWS)}, s{sN0+v-1} offen offset:{1024*q} sc1")
        A(f"s_lshl_b32 s{sD}, s{sG}, 13\ns_add_u32 s{sD}, s{sD}, s{sPBs}")
        for v in (1, 2, 3):
            A(f"s_xor_b32 s{sT0}, s{sG}, {v}\ns_lshl_b32 s{sT0}, s{sT0}, 11\ns_add_u32 s{sN0+v-1}, s{sT0}, s{sD}")
        A(f"""
        s_waitcnt vmcnt(0)
        s_mov_b64 exec, 2
        buffer_store_dwordx2 {vr(vTAG,2)}, v{vFOWN}, {sr(sWS)}, 0 offen sc1
        s_mov_b64 exec, -1
        """)
        self.emit(self.stamp(8))
        self.spin(f"L_p2_{NQ}", vF2P, sWS, f"v_cmp_ne_u64 vcc, {vr(vTAG,2)}, {vr(vPOLL,2)}")
        self.emit(self.stamp(9))
        for v in (1, 2, 3):
            for q in range(NQ):
                A(f"buffer_load_dwordx4 {vr(vY+8*v+4*q)}, v{vL16}, {sr(sWS)}, s{sN0+v-1} offen offset:{1024*q} sc1")
        for v in (1, 2, 3):
            A(f"s_waitcnt vmcnt({NQ*(3-v)})")
            for i in range(4 * NQ): A(f"v_add_f32 v{vY+i}, v{vY+i}, v{vY+8*v+i}")
        for i in range(2 * NQ): A(f"v_cvt_pk_bf16_f32 v{vP+i}, v{vY+2*i}, v{vY+2*i+1}")
        A(f"""
        s_nop 1
        v_permlane16_swap_b32 v{vP}, v{vP+2}
        v_permlane16_swap_b32 v{vP+1}, v{vP+3}
        buffer_store_dwordx4 {vr(vP)}, v{vOUTA}, {sr(sOUT)}, 0 offen
        """)
        if self.stamps and NQ == 2:
            A("s_waitcnt vmcnt(0)")
            self.emit(self.stamp(10))
            A(f"""
            s_waitcnt lgkmcnt(0)
            s_cmp_lg_u32 s{sW}, 0
            s_cbranch_scc1 L_end
            s_add_u32 s{sX}, s18, {STAMP_OFF}
            s_addc_u32 s{sX+1}, s19, 0
            s_mov_b32 s{sX+2}, 0x100000
            s_lshl_b32 s{sT0}, s2, 8
            v_mov_b32 v4, s{sT0}
            s_mov_b64 exec, 1
            """)
            if self.stamps == "dbg":
                A(f"s_cmp_lg_u32 s2, 37\ns_cbranch_scc1 L_end\nv_mov_b32 v5, 0")
                for i in range(self.nst):
                    A(f"s_sub_u32 s{sT0}, s{STAMP0+2*i}, s{STAMP0}\nv_mov_b32 v2, s{sT0}\nbuffer_store_dword v2, v5, {sr(sDBG)}, 0 offen offset:{8+4*i}\ns_nop 1")
            for i in range(self.nst):
                A(f"v_mov_b32 v2, s{STAMP0+2*i}\nv_mov_b32 v3, s{STAMP0+2*i+1}\nbuffer_store_dwordx2 v[2:3], v4, {sr(sX)}, 0 offen offset:{8*i}\ns_nop 1")
        A("L_end:\ns_endpgm" if NQ == 2 else "s_endpgm")
    def tail_slow(self):
        A = self.A; NQ = self.NQ
        A(f"L_slow_{NQ}:\ns_waitcnt lgkmcnt(0)")
        for n in range(8): self.ostep(n, reads=n < 6, adv=False)
        A("s_waitcnt vmcnt(0)")
        self.emit(self.PUBLISH1)
        self.emit(self.select(1, True))
        for k in range(4 * NQ): A(self.oload(1, k))
        for k in range(4): A(f"v_add_u32 v{vOR+k}, s{sSL+1}, v{vORB+k}")
        self.emit(self.woreads(8) + self.woreads(9))
        self.emit(self.select(2, True))
        for k in range(4 * NQ): A(self.oload(2, k))
        A(f"s_branch L_common_{NQ}")

    def capture(self, *fs):
        m = self.mark()
        for f in fs: f()
        r = self.A.l[m:]; del self.A.l[m:]
        return r
    def path(self, NQ):
        self.NQ = NQ; vm0 = list(self.vm)
        main = autowait(self.capture(self.qphase, self.attn_prologue, self.attn_loop, lambda: self.A(f"L_tail_{NQ}:"), self.tail))
        slow = autowait(self.capture(self.tail_slow))
        tramp = self.capture(lambda: [self.A(f"L_xt{r}_{NQ}:\ns_call_b64 s[{sRET}:{sRET+1}], L_x\ns_branch L_xb{r}_{NQ}") for r in range(3)])
        rare = self.capture(self.rescale)
        self.vm = vm0
        ix = lambda lab: [l.strip() for l in main].index(lab)
        la, le, lf, lc = ix(f"L_a_{NQ}:"), ix(f"L_tail_{NQ}:"), ix(f"L_fast_{NQ}:"), ix(f"L_common_{NQ}:")
        errs = hazard.check(self.segs["pro"] + main[:le] + main[la:], f"main{NQ}")
        errs += hazard.check(main[le:lf] + slow + main[lc:], f"slow{NQ}")
        out = []
        for l in main[la:lf]:
            out.append(l)
            mm = re.match(r"s_cbranch_vccnz L_rs_(\d)_", l.strip())
            if mm: out += ["s_nop 0", "s_nop 0"] + self.segs[f"rs{'BA'[int(mm.group(1))%2]}{NQ}"] + ["s_nop 0", "s_nop 0"]
        errs += hazard.check(out, f"rare{NQ}")
        return errs, main[:le] + [f"    s_branch L_tail_{NQ}"] + tramp, main[le:] + slow, rare

    def build(self):
        self.polls = []
        m = self.mark(); self.prologue(); self.seg("pro", m)
        errs, hot, tail, rare = self.path(2)
        if self.one:
            e1, h1, t1, r1 = self.path(1)
            errs += e1; hot += ["L_one:"] + h1; tail += t1; rare += r1
        self.A.l += hot
        self.loop_extras()
        self.A("L_hot_end:")
        self.A.l += tail
        self.poll_blocks()
        self.A("L_tail_end:")
        self.A.l += rare
        errs += [e for e in hazard.check(self.segs["x"], "extras") if f"{vTAG}" not in e]
        for e in sorted(set(errs)): print("HAZARD", e, file=sys.stderr)
        assert self.nst <= 13
        return kernel_file([(KN, 256, 256, 10 * SLOT)], {KN: (self.A.text(), 512, 256, 102)})

if __name__ == "__main__":
    import argparse
    ap = argparse.ArgumentParser()
    ap.add_argument("-o", default="main.s"); ap.add_argument("--stamps", nargs="?", const="ws", default=None)
    ap.add_argument("--kv", default="nt"); ap.add_argument("--xw", default="nt"); ap.add_argument("--wo", default="nt")
    ap.add_argument("--dump", default=None); ap.add_argument("-T", type=float, default=8.0)
    ap.add_argument("--nopf", action="store_true"); ap.add_argument("--nodma", action="store_true")
    ap.add_argument("--sleep", type=int, default=4); ap.add_argument("--noone", action="store_true")
    ap.add_argument("--nowopf", action="store_true"); ap.add_argument("--dpos", type=int, default=1)
    a = ap.parse_args()
    g = Gen(stamps=a.stamps, kv=a.kv, xw=a.xw, wo=a.wo, dump=a.dump, T=a.T, pf=not a.nopf, nodma=a.nodma, sleep=a.sleep, one=not a.noone, wopf=not a.nowopf, dpos=a.dpos)
    open(a.o, "w").write(g.build())
    print("stamps:", g.nst)
```

```python
import sys, math, struct, re
from asmlib import *
import hazard

STAMP_OFF = 240 << 20
SLOT = 16384
PB = 8 << 20
F1 = 16 << 20
F2 = F1 + (128 << 10)
EPOCH = F2 + (128 << 10)
WS_SIZE = EPOCH + 128
SCALE = math.log2(math.e) / math.sqrt(128.0)
def f2u(x): return struct.unpack("<I", struct.pack("<f", x))[0]

sX, sWQ, sK, sV, sWO, sWS, sOUT, sDBG = 20, 24, 28, 32, 36, 40, 44, 48
sW, sB, sH, sJ, sG, sW4K, sCC, sT = 52, 53, 54, 55, 56, 57, 58, 59
sT0, sT1 = 60, 61
sRET = 62
sKSO, sVSO = 64, 65
sN0 = 66
sD = 69
sSC = 70
sXM = 71
sAT = 72
sOB = 73
sPBs = 74
sSPIN = 75
sRO = (64, 65, 71)
sGB = 3
sLIM = 14
sW4B = 6
sSOA, sSOB = 4, 5
sRDY, sPEND = 7, 8
sSL = 9
sO0 = 12
STAMP0 = 76
vKR, vVR, vKD, vVD, vXD, vWD, vOD, vORB, vOR = 8, 12, 20, 24, 28, 32, 36, 40, 44
vMX0, vMX1 = 48, 49
vCNT, vF1P, vF2P, vL16, vOUTA, vFOWN = 50, 51, 52, 53, 54, 55
vONE = 56; vT = 60
vTAG = 184
vPOLL = 186
vF2S = 188
vGS, vGR = 128, 152
vO, vSA, vSB, vCI, vL, vP, vQ, vY = 64, 128, 144, 160, 168, 176, 192, 224
vWR, vXR = 128, 144
def qacc(db, q): return (160 + 8 * db if db < 3 else 148 if db == 3 else 192 + 8 * db) + 4 * q
aK, aV = 0, 32
XSL, WSL = (1, 2, 6, 8), (4, 5, 7, 9)
def vr(b, n=4): return f"v[{b}:{b+n-1}]"
def ar(b, n=4): return f"a[{b}:{b+n-1}]"
def sr(b, n=4): return f"s[{b}:{b+n-1}]"
MF = "v_mfma_f32_16x16x32_bf16"

def autowait(lines, slack=20):
    out = []; q = []; n = 0
    for l in lines:
        d = hazard.parse(l)
        if d is None: out.append(l); continue
        if d["mn"] == "s_waitcnt":
            m = re.search(r"lgkmcnt\((\d+)\)", d["text"])
            if m: q = q[max(0, len(q) - int(m.group(1))):]
        else:
            use = set(d["r"]) | set(d["w"])
            need = max([i for i, (w, _) in enumerate(q) if use & w], default=-1)
            if need >= 0:
                while need + 1 < len(q) and n - q[need + 1][1] >= slack: need += 1
                need = max(need, len(q) - 16)
                left = len(q) - 1 - need
                prev = out[-1].strip()
                if prev.startswith("s_waitcnt vmcnt") and "lgkm" not in prev: out[-1] = out[-1] + f" lgkmcnt({left})"
                else: out.append(f"    s_waitcnt lgkmcnt({left})")
                q = q[need + 1:]
            if d["kind"] == "ds": q.append((set(d["w"]), n))
        out.append(l); n += 1
    return out

class Gen:
    def __init__(self, **kw):
        self.A = Asm(); self.nst = 0; self.segs = {}
        self.stamps = None; self.kv = "nt"; self.xw = "nt"; self.wo = "nt"; self.dump = None; self.T = 8.0
        self.pf = True; self.nodma = False; self.sleep = 4; self.one = True; self.wopf = True; self.dpos = 1; self.stag = None; self.bpf = 'ok'; self.lim = 0; self.limw = 8; self.map = '4x8'; self.wosteps = (4, 4, 4, 4); self.flags = 'so'; self.warm = False; self.sleep1 = 4; self.gran = True; self.probe = 1020; self.apoll = False; self.eps = 0; self.prepoll = False; self.spinmax = 4000000; self.pollpos = 1; self.nfast = 2; self.rot = '24'; self.fld = 'sc1'; self.fst = 'sc1'
        self.kvsched = {5: ["K0", "V0"], 6: ["K1"], 7: ["V1"], 8: ["K2"], 9: ["V2"]}
        if kw.get("kvs") == 1: self.kvsched = {5: ["K0", "V0"], 6: ["K1", "V1"], 8: ["K2"], 9: ["V2"]}
        self.__dict__.update(kw)
        self.vm = []
    def stamp(self, k):
        sets = {"ws": range(11), "dbg": range(11), "cyc": range(11), "loop": (0, 1, 2, 3, 11, 12, 13, 14, 4, 5, 7, 10), "q": (0, 1, 20, 21, 22, 23, 25, 27, 2, 3, 4, 10)}
        if not self.stamps or k not in sets[self.stamps]: return []
        i = list(sets[self.stamps]).index(k); self.nst = max(self.nst, i + 1)
        return [f"{'s_memtime' if self.stamps == 'cyc' else 's_memrealtime'} s[{STAMP0+2*i}:{STAMP0+2*i+1}]"]
    def mark(self): return len(self.A.l)
    def seg(self, name, a): self.segs[name] = self.A.l[a:]
    def emit(self, l):
        for x in l: self.A(x)
    def weave(self, mf, gaps):
        assert len(mf) == len(gaps)
        for m, g in zip(mf, gaps):
            self.A(m); self.emit(g)
    def younger(self, tag): return len(self.vm) - 1 - max(i for i, t in enumerate(self.vm) if t == tag)

    def dma(self, v, srd, so, flag, n=4):
        return [f"buffer_load_dwordx4 v{v+p}, {sr(srd)}, s{so} offen offset:{1024*p} {flag} lds" for p in range(n)]
    def dma_k(self): return ["s_nop 0"] * 4 if self.nodma else self.dma(vKD, sK, sKSO, self.kv)
    def dma_v(self): return ["s_nop 0"] * 4 if self.nodma else self.dma(vVD, sV, sVSO, self.kv)
    def m0(self, slot): return f"s_add_u32 m0, s{sW4K}, {slot*SLOT}"
    def next_chunk(self):
        return [f"s_lshl_b32 s{sSOA}, s{sCC}, 7", f"s_lshl_b32 s{sSOB}, s{sCC}, 19",
                f"s_add_u32 s{sCC}, s{sCC}, 1", f"s_and_b32 s{sCC}, s{sCC}, 7"]

    def prologue(self):
        A = self.A
        self.emit(self.stamp(0))
        A(f"""
        s_cmp_ge_u32 s2, 256
        s_cbranch_scc1 L_end
        s_load_dwordx16 s[4:19], s[0:1], 0
        v_lshrrev_b32 v1, 6, v0
        v_and_b32 v0, 63, v0
        s_and_b32 s{sT0}, s2, 7
        v_readfirstlane_b32 s{sW}, v1
        """)
        if self.pf:
            A(f"""
            s_getpc_b64 s[{sRET}:{sRET+1}]
            L_pcref:
            v_lshlrev_b32 v{vT}, 13, v1
            v_lshl_add_u32 v{vT}, v0, 7, v{vT}
            v_min_u32 v{vT}, L_hot_end - L_pcref, v{vT}
            global_load_dword v{vMX0}, v{vT}, s[{sRET}:{sRET+1}]
            """)
        A(f"""
        s_lshr_b32 s{sG}, s{sT0}, 1
        s_and_b32 s{sT0}, s{sT0}, 1
        s_lshr_b32 s{sAT}, s2, 3
        """)
        if self.map == "8x4":
            A(f"""
            s_and_b32 s{sD}, s{sAT}, 3
            s_lshr_b32 s{sJ}, s{sAT}, 2
            s_lshl_b32 s{sB}, s{sT0}, 2
            s_add_u32 s{sB}, s{sB}, s{sD}
            s_lshl_b32 s{sT1}, s{sD}, 1
            s_add_u32 s{sCC}, s{sJ}, s{sT1}
            """)
        else:
            A(f"""
            s_and_b32 s{sB}, s{sAT}, 7
            s_lshr_b32 s{sD}, s{sAT}, 3
            s_lshl_b32 s{sJ}, s{sT0}, 2
            s_add_u32 s{sJ}, s{sJ}, s{sD}
            s_mul_i32 s{sT1}, s{sD}, {self.rot[1]}
            s_mul_i32 s{sCC}, s{sB}, {self.rot[0]}
            s_add_u32 s{sCC}, s{sCC}, s{sT1}
            """)
        A(f"""
        s_lshl_b32 s{sH}, s{sG}, 3
        s_add_u32 s{sH}, s{sH}, s{sJ}
        s_and_b32 s{sCC}, s{sCC}, 7
        s_lshl_b32 s{sW4K}, s{sW}, 12
        v_lshrrev_b32 v2, 4, v0
        v_and_b32 v3, 15, v0
        v_lshrrev_b32 v6, 3, v0
        v_and_b32 v7, 7, v0
        s_lshl_b32 s{sT0}, s{sW}, 5
        v_add_u32 v5, s{sT0}, v6
        v_xor_b32 v1, v2, v7
        v_lshlrev_b32 v1, 4, v1
        v_lshl_add_u32 v{vXD}, v5, 10, v1
        v_xor_b32 v1, 64, v1
        v_lshl_add_u32 v{vXD+1}, v5, 10, v1
        s_cmp_eq_u32 s{sW}, 3
        s_cselect_b32 s{sT0}, 16384, 0
        s_sub_u32 s{sT0}, 14336, s{sT0}
        v_add_u32 v{vXD+1}, 7168, v{vXD+1}
        v_add_u32 v{vXD+2}, s{sT0}, v{vXD}
        v_add_u32 v{vXD+3}, s{sT0}, v{vXD+1}
        v_lshlrev_b32 v4, 1, v2
        v_xor_b32 v4, v4, v3
        v_lshlrev_b32 v4, 4, v4
        s_lshl_b32 s{sT0}, s{sW}, 4
        v_add_u32 v1, s{sT0}, v2
        v_lshl_add_u32 v{vWD}, v1, 13, v4
        s_mul_i32 s{sT0}, s{sB}, 114688
        s_lshl_b32 s{sT1}, s{sH}, 8
        v_xor_b32 v{vWD+2}, 128, v{vWD}
        v_add_u32 v{vWD+1}, {4*8192-1024}, v{vWD}
        v_add_u32 v{vWD+3}, {3*(4*8192-1024)}, v{vWD+2}
        v_add_u32 v{vWD+2}, {2*(4*8192-1024)}, v{vWD+2}
        s_mov_b32 s{sX+2}, 114688
        s_mov_b32 s{sX+3}, 0x20000
        s_sub_u32 s{sWQ+2}, 0x400000, s{sT1}
        s_mov_b32 s{sWQ+3}, 0x20000
        {self.m0(XSL[0])}
        s_waitcnt lgkmcnt(0)
        s_add_u32 s{sX}, s4, s{sT0}
        s_addc_u32 s{sX+1}, s5, 0
        s_add_u32 s{sWQ}, s10, s{sT1}
        s_addc_u32 s{sWQ+1}, s11, 0
        """)
        def pair(c):
            self.emit(self.next_chunk())
            self.emit(self.dma(vXD, sX, sSOA, self.xw))
            A(self.m0(WSL[c]) + "\ns_nop 0")
            self.emit(self.dma(vWD, sWQ, sSOB, self.xw))
            self.vm += [f"P{c}"] * 8
        if self.stag is not None:
            A(f"s_bitcmp{1-self.stag}_b32 s{sB}, 0\ns_cselect_b32 s{sGB}, 0, {SLOT}\ns_cbranch_scc0 L_bfirst\nL_pairs:")
        else: A(f"s_mov_b32 s{sGB}, 0")
        pair(0)
        A(self.m0(XSL[1])); pair(1)
        A(f"""
        s_add_u32 s{sOUT}, s14, s{sT0}
        s_addc_u32 s{sOUT+1}, s15, 0
        s_lshl_b32 s{sT0}, s{sB}, 5
        s_add_u32 s{sT0}, s{sT0}, s{sH}
        s_lshl_b32 s{sT0}, s{sT0}, 18
        s_add_u32 s{sK}, s6, s{sT0}
        s_addc_u32 s{sK+1}, s7, 0
        s_mov_b32 s{sK+2}, 0x40000
        s_mov_b32 s{sK+3}, 0x20000
        s_add_u32 s{sV}, s8, s{sT0}
        s_addc_u32 s{sV+1}, s9, 0
        s_mov_b32 s{sV+2}, 0x40000
        s_mov_b32 s{sV+3}, 0x20000
        s_add_u32 s{sW4B}, s{sW4K}, s{sGB}
        s_cmp_eq_u32 s{sGB}, 0
        s_cselect_b32 s{sLIM}, {self.lim}, 0
        s_mov_b32 s{sOUT+2}, 114688
        s_mov_b32 s{sOUT+3}, 0x20000
        s_lshl_b32 s{sT0}, s{sG}, 20
        s_lshl_b32 s{sT1}, s{sJ}, 7
        s_add_u32 s{sT0}, s{sT0}, s{sT1}
        s_add_u32 s{sWO}, s12, s{sT0}
        s_addc_u32 s{sWO+1}, s13, 0
        s_sub_u32 s{sWO+2}, 0x400000, s{sT0}
        s_mov_b32 s{sWO+3}, 0x20000
        s_mov_b32 s{sWS}, s18
        s_mov_b32 s{sWS+1}, s19
        s_mov_b32 s{sWS+2}, {WS_SIZE}
        s_mov_b32 s{sWS+3}, 0x20000
        s_mov_b32 s{sDBG}, s16
        s_mov_b32 s{sDBG+1}, s17
        s_mov_b32 s{sDBG+2}, 256
        s_mov_b32 s{sDBG+3}, 0x20000
        s_mov_b32 s{sSC}, {f2u(SCALE):#x}
        """)
        if self.map == "8x4":
            A(f"""
            s_lshl_b32 s{sD}, s{sAT}, 2
            s_add_u32 s{sD}, s{sD}, s{sW}
            s_lshl_b32 s{sD}, s{sD}, 13
            s_sub_u32 s{sD}, s{sD}, s{sT1}
            v_lshl_add_u32 v{vMX1}, v0, 7, s{sD}
            """)
        elif self.stag is not None:
            A(f"""
            s_lshl_b32 s{sT0}, s{sD}, 2
            s_lshr_b32 s{sT1}, s{sB}, 1
            s_add_u32 s{sT0}, s{sT0}, s{sT1}
            s_lshl_b32 s{sT0}, s{sT0}, 2
            s_add_u32 s{sT0}, s{sT0}, s{sW}
            s_lshl_b32 s{sT0}, s{sT0}, 14
            s_lshl_b32 s{sD}, s{sD}, 7
            s_sub_u32 s{sD}, s{sT0}, s{sD}
            s_lshl_b32 s{sT0}, s{sGB}, 12
            s_add_u32 s{sD}, s{sD}, s{sT0}
            v_lshrrev_b32 v{vMX1}, 2, v0
            v_lshl_add_u32 v{vMX1}, v{vMX1}, 10, s{sD}
            v_and_b32 v{vT}, 3, v0
            v_lshl_add_u32 v{vMX1}, v{vT}, 7, v{vMX1}
            """)
        else:
            A(f"""
            s_lshl_b32 s{sD}, s{sD}, 7
            s_lshl_b32 s{sT0}, s{sAT}, 2
            s_add_u32 s{sT0}, s{sT0}, s{sW}
            s_lshl_b32 s{sT0}, s{sT0}, 13
            s_sub_u32 s{sD}, s{sT0}, s{sD}
            v_bfe_u32 v{vMX1}, v0, 2, 3
            v_lshl_add_u32 v{vMX1}, v{vMX1}, 10, s{sD}
            v_and_b32 v{vT}, 3, v0
            v_lshl_add_u32 v{vMX1}, v{vT}, 7, v{vMX1}
            """)
        A(f"""
        s_lshl_b32 s{sT1}, s{sJ}, 2
        s_lshr_b32 s{sT1}, 0x52419876, s{sT1}
        s_and_b32 s{sT1}, s{sT1}, 15
        s_lshl_b32 s{sSL}, s{sT1}, 14
        """)
        own = self.flags[0] == "o"; own2 = self.flags[1] == "o"
        A(f"""
        s_lshl_b32 s{sT0}, s{sB}, 2
        s_add_u32 s{sT0}, s{sT0}, s{sG}
        s_lshl_b32 s{sOB}, s{sT0}, 18
        s_lshl_b32 s{sT1}, s{sW}, 13
        s_add_u32 s{sOB}, s{sOB}, s{sT1}
        s_lshl_b32 s{sT0}, s{sT0}, 2
        s_add_u32 s{sT0}, s{sT0}, s{sW}
        s_lshl_b32 s{sT0}, s{sT0}, 10
        s_add_u32 s{sT0}, s{sT0}, {F1}
        v_add_u32 v{vT}, s{sJ}, v0
        v_and_b32 v{vT}, 7, v{vT}
        s_lshl_b32 s{sT1}, s{sJ}, 7
        {f"s_add_u32 s{sT1}, s{sT0}, s{sT1}" if own else f"s_mov_b32 s{sT1}, s{sT0}"}
        v_lshl_add_u32 v{vF1P}, v{vT}, 3, s{sT1}
        s_lshl_b32 s{sT1}, s{sJ}, 3
        s_add_u32 s{sT1}, s{sT0}, s{sT1}
        {f"v_lshl_add_u32 v{vFOWN}, v{vT}, 7, s{sT1}" if own else f"v_mov_b32 v{vFOWN}, s{sT1}"}
        s_lshl_b32 s{sT0}, s{sB}, 3
        s_add_u32 s{sT0}, s{sT0}, s{sJ}
        s_lshl_b32 s{sT0}, s{sT0}, 2
        s_add_u32 s{sT0}, s{sT0}, s{sW}
        s_lshl_b32 s{sPBs}, s{sT0}, 15
        s_add_u32 s{sPBs}, s{sPBs}, {PB}
        s_lshl_b32 s{sT0}, s{sT0}, 9
        s_add_u32 s{sT0}, s{sT0}, {F2}
        v_and_b32 v{vT}, 3, v0
        v_max_u32 v{vT}, 1, v{vT}
        v_xor_b32 v{vT}, s{sG}, v{vT}
        s_lshl_b32 s{sT1}, s{sG}, 7
        {f"s_add_u32 s{sT1}, s{sT0}, s{sT1}" if own2 else f"s_mov_b32 s{sT1}, s{sT0}"}
        v_lshl_add_u32 v{vF2P}, v{vT}, 3, s{sT1}
        s_lshl_b32 s{sT1}, s{sG}, 3
        s_add_u32 s{sT1}, s{sT0}, s{sT1}
        {f"v_lshl_add_u32 v{vF2S}, v{vT}, 7, s{sT1}" if own2 else f"v_mov_b32 v{vF2S}, s{sT1}"}
        v_mov_b32 v{vCNT}, {EPOCH}
        s_or_b32 s{sAT}, s2, s{sW}
        s_cbranch_scc1 L_noepoch
        buffer_load_dwordx2 {vr(vTAG,2)}, v{vCNT}, {sr(sWS)}, 0 offen sc1
        L_noepoch:
        """)
        A(f"""
        v_lshrrev_b32 v6, 1, v3
        v_xor_b32 v6, v6, v2
        v_lshlrev_b32 v6, 4, v6
        v_lshl_add_u32 v6, v3, 7, v6
        s_add_u32 s{sT0}, s{sW4K}, {XSL[0]*SLOT}
        v_add_u32 v{vXR}, s{sT0}, v6
        v_xor_b32 v{vXR+1}, 64, v{vXR}
        v_add_u32 v{vXR+2}, {(XSL[2]-XSL[0])*SLOT}, v{vXR}
        v_add_u32 v{vXR+3}, {(XSL[2]-XSL[0])*SLOT}, v{vXR+1}
        v_bfe_u32 v{vT}, v0, 2, 2
        v_and_b32 v{vT+1}, 3, v0
        v_and_b32 v6, 1, v2
        v_lshl_add_u32 v6, v6, 2, v{vT}
        v_lshlrev_b32 v6, 5, v6
        v_lshl_add_u32 v6, v{vT+1}, 3, v6
        v_lshl_add_u32 v6, v{vT}, 8, v6
        v_lshl_add_u32 v{vVR}, v2, 10, v6
        v_lshl_add_u32 v6, v2, 11, v6
        v_add_u32 v{vWR}, {WSL[0]*SLOT}, v6
        """)
        for db in range(1, 8): A(f"v_xor_b32 v{vWR+db}, {db*32}, v{vWR}")
        for db in range(8): A(f"v_add_u32 v{vWR+8+db}, {(WSL[2]-WSL[0])*SLOT}, v{vWR+db}")
        A(self.m0(XSL[2])); pair(2)
        self.emit(self.stamp(1))
        late = [f"v_lshl_add_u32 v{vVD}, v1, 8, v4", f"v_xor_b32 v{vVD+1}, 128, v{vVD}", f"v_mov_b32 v{vVD+2}, v{vVD}", f"v_mov_b32 v{vVD+3}, v{vVD+1}"]
        for p in range(4):
            late += [f"v_add_u32 v4, {4*p}, v2", "v_xor_b32 v4, v4, v3", "v_lshlrev_b32 v4, 4, v4", f"v_lshl_add_u32 v{vKD+p}, v1, 8, v4"]
        late += [f"v_add_u32 v{vVR}, {3*SLOT}, v{vVR}"] + [f"v_xor_b32 v{vVR+db}, {db*32}, v{vVR}" for db in range(1, 8)]
        late += ["v_xor_b32 v6, v2, v3", "v_lshlrev_b32 v6, 4, v6", f"v_lshl_add_u32 v{vKR}, v3, 8, v6"]
        late += [f"v_xor_b32 v{vKR+s}, {s*64}, v{vKR}" for s in range(1, 4)]
        late += ["v_lshlrev_b32 v6, 1, v2", "v_xor_b32 v6, v6, v7", "v_lshlrev_b32 v6, 4, v6", f"v_lshl_add_u32 v{vOD}, v5, 10, v6"]
        late += [f"v_add_u32 v{vOD+p}, {p*7168}, v{vOD}" for p in range(1, 4)]
        late += ["v_and_b32 v6, 1, v2", "v_lshlrev_b32 v6, 1, v6", f"v_lshrrev_b32 v4, 1, v{vT}", "v_or_b32 v6, v6, v4", f"v_xor_b32 v6, s{sG}, v6",
                 "v_lshlrev_b32 v6, 5, v6", f"v_lshl_add_u32 v6, v{vT+1}, 3, v6", f"v_lshl_add_u32 v6, v{vT}, 7, v6", f"v_lshl_add_u32 v{vORB}, v2, 9, v6"]
        late += [f"v_xor_b32 v{vORB+n}, {n*32}, v{vORB}" for n in range(1, 4)]
        late += ["v_and_b32 v6, 1, v2", "v_lshl_add_u32 v6, v6, 4, v3", "v_lshlrev_b32 v6, 10, v6", f"v_lshl_add_u32 v6, s{sW}, 15, v6",
                 f"v_lshl_add_u32 v6, s{sJ}, 7, v6", f"v_lshl_add_u32 v6, s{sG}, 5, v6", "v_lshrrev_b32 v4, 1, v2", f"v_lshl_add_u32 v{vOUTA}, v4, 4, v6",
                 f"v_lshlrev_b32 v{vL16}, 4, v0"]
        late += [f"v_mov_b32 v{vONE+i}, 0x3f803f80" for i in range(4)]
        self.late = late
        if self.one: A(f"s_cmp_eq_u32 s{sW}, 3\ns_cbranch_scc1 L_one")

    def q_reads(self, c, st):
        s, dh = st // 2, st % 2
        hi = (c % 4) // 2
        xo = (XSL[c % 4] - XSL[2 * hi]) * SLOT; wo = (WSL[c % 4] - WSL[2 * hi]) * SLOT
        r = [f"ds_read_b128 {ar(64+8*s+4*q)}, v{vXR+2*hi+s} offset:{xo+2048*q}" for q in range(self.NQ)] if dh == 0 else []
        for d in range(4):
            for a in range(2):
                r.append(f"ds_read_b64_tr_b16 {ar(16*st+4*d+2*a,2)}, v{vWR+8*hi+4*dh+d} offset:{wo+s*8192+a*1024}")
        return r
    def q_mfs(self, st, first=False):
        s, dh = st // 2, st % 2
        return [f"{MF} {vr(qacc(4*dh+d,q))}, {ar(16*st+4*d)}, {ar(64+8*s+4*q)}, {'0' if first else vr(qacc(4*dh+d,q))}"
                for d in range(4) for q in range(self.NQ)]
    @staticmethod
    def spread(items, n, start=0):
        g = [[] for _ in range(n)]
        k = n - start
        for i, x in enumerate(items): g[start + i * k // max(len(items), 1)].append(x)
        return g
    def qphase(self):
        A = self.A; NQ = self.NQ; G = 4 * NQ
        late = list(self.late) + [f"v_mov_b32 v{vO+8*db+4*q+i}, 0" for q in range(NQ) for db in range(8) for i in range(4)]
        for c in range(8):
            d = []
            if c <= 4:
                nc = self.next_chunk()
                d = [([self.m0(XSL[(c + 3) % 4])] + nc[:2], self.dma(vXD, sX, sSOA, self.xw, 2 * NQ), f"P{c+3}"),
                     ([self.m0(WSL[(c + 3) % 4])] + nc[2:], self.dma(vWD, sWQ, sSOB, self.xw), f"P{c+3}")]
            for it in self.kvsched.get(c, []): d.append(self.kv_item(it))
            bar = [f"s_waitcnt vmcnt({self.younger(f'P{c}')})", "s_barrier"] + self.stamp(20 + c)
            seq = []
            if self.wopf and c in self.wosteps:
                ws = [w for w in range(4) if self.wosteps[w] == c and (w < 3) == (NQ == 2)]
                ld = f"buffer_load_dword v{vMX1}, v{vMX1}, {sr(sWO)}, 0 offen"
                if len(ws) == (3 if NQ == 2 else 1): seq.append([ld])
                elif ws: seq.append([f"s_bitcmp1_b32 {sum(1 << w for w in ws)}, s{sW}\ns_cbranch_scc0 L_nopf{c}\n{ld}\nL_nopf{c}:"])
            for su, ld, tag in d:
                seq += [su] + [[x] for x in ld]; self.vm += [tag] * len(ld)
            if c == 0:
                self.emit(bar + self.q_reads(0, 0) + self.q_reads(0, 1))
                order = ((0, 2), (1, 3))
            else:
                A("s_waitcnt lgkmcnt(0)")
                order = ((2, 0), (3, 1), (0, 2), (1, 3))
            ng = G * len(order)
            dg = self.spread(seq, ng, 1)
            for k, (sm, srd) in enumerate(order):
                rd = self.q_reads(c, srd)
                first = 1 if (sm == 2 and NQ == 2) else 0
                nr = 5 if NQ == 2 else G
                rg = [[]] * first + self.spread(rd, nr) + [[]] * (G - nr - first)
                if sm == 2: rg[0] = bar + rg[0]
                gaps = []
                for g in range(G):
                    x = rg[g] + sum(dg[k * G + g], [])
                    if c >= 1 and (len(x) < 2 or NQ == 1):
                        n = 2 - (len(x) > 0) + (NQ == 1 and c <= 3); x = x + late[:n]; late = late[n:]
                    gaps.append(x)
                self.weave(self.q_mfs(sm, c == 0), gaps)
            if c == 4: assert len(late) <= 32 * NQ, len(late)
        assert not late
        self.emit(self.q_mfs(2) + self.q_mfs(3))
    def kv_item(self, it):
        t = int(it[1:])
        if it[0] == "K": return ([f"s_add_u32 m0, s{sW4B}, {t*SLOT}", f"s_add_u32 s{sKSO}, s{sGB}, {t*SLOT}"], self.dma_k(), it)
        return ([f"s_add_u32 m0, s{sW4B}, {(3+t)*SLOT}", f"s_add_u32 s{sVSO}, s{sGB}, {t*SLOT}"], self.dma_v(), it)
    def bfirst(self):
        A = self.A
        m = self.mark()
        A(f"""
        L_bfirst:
        s_lshl_b32 s{sKSO}, s{sD}, 2
        s_add_u32 s{sKSO}, s{sKSO}, s{sW}
        s_mul_i32 s{sKSO}, s{sKSO}, 7168
        v_min_u32 v{vT}, 55, v0
        v_lshlrev_b32 v{vT}, 7, v{vT}
        buffer_load_dword v{vPOLL}, v{vT}, {sr(sX)}, s{sKSO} offen
        s_lshl_b32 s{sVSO}, s{sB}, 5
        s_add_u32 s{sVSO}, s{sVSO}, s{sH}
        s_lshl_b32 s{sVSO}, s{sVSO}, 18
        s_add_u32 s{sK}, s6, s{sVSO}
        s_addc_u32 s{sK+1}, s7, 0
        s_mov_b32 s{sK+2}, 0x40000
        s_mov_b32 s{sK+3}, 0x20000
        s_add_u32 s{sV}, s8, s{sVSO}
        s_addc_u32 s{sV+1}, s9, 0
        s_mov_b32 s{sV+2}, 0x40000
        s_mov_b32 s{sV+3}, 0x20000
        s_mov_b32 s{sKSO}, 0
        s_mov_b32 s{sVSO}, 0
        {self.m0(0)}
        """)
        for p, x in enumerate(self.dma_k()):
            A(f"v_add_u32 v{vT}, {4*p}, v2\nv_xor_b32 v{vT}, v{vT}, v3\nv_lshlrev_b32 v{vT}, 4, v{vT}\nv_lshl_add_u32 v{vKD+p}, v1, 8, v{vT}\n{x}")
        A(f"{self.m0(3)}\nv_lshl_add_u32 v{vVD}, v1, 8, v4\nv_xor_b32 v{vVD+1}, 128, v{vVD}\nv_mov_b32 v{vVD+2}, v{vVD}\nv_mov_b32 v{vVD+3}, v{vVD+1}")
        self.emit(self.dma_v())
        nk = sum(c == "k" for c in self.bpf)
        if nk: A(f"v_and_b32 v{vT}, 31, v0\nv_lshlrev_b32 v{vT}, 7, v{vT}")
        for t in range(1, nk + 1):
            A(f"""
            s_add_u32 s{sKSO}, s{sW4K}, {t*SLOT}
            buffer_load_dword v{vPOLL}, v{vT}, {sr(sK)}, s{sKSO} offen
            buffer_load_dword v{vPOLL+1}, v{vT}, {sr(sV)}, s{sKSO} offen
            """)
        if "o" in self.bpf:
            A(f"""
            s_lshl_b32 s{sKSO}, s{sG}, 20
            s_add_u32 s{sWO}, s12, s{sKSO}
            s_addc_u32 s{sWO+1}, s13, 0
            s_mov_b32 s{sWO+2}, 0x100000
            s_mov_b32 s{sWO+3}, 0x20000
            s_lshl_b32 s{sKSO}, s{sD}, 2
            s_lshr_b32 s{sVSO}, s{sB}, 1
            s_add_u32 s{sKSO}, s{sKSO}, s{sVSO}
            s_lshl_b32 s{sKSO}, s{sKSO}, 2
            s_add_u32 s{sKSO}, s{sKSO}, s{sW}
            s_lshl_b32 s{sKSO}, s{sKSO}, 14
            s_lshr_b32 s{sVSO}, s{sJ}, 2
            s_lshl_b32 s{sVSO}, s{sVSO}, 9
            s_add_u32 s{sKSO}, s{sKSO}, s{sVSO}
            v_lshrrev_b32 v{vT}, 2, v0
            v_and_b32 v{vT+1}, 3, v0
            v_lshlrev_b32 v{vT+1}, 7, v{vT+1}
            v_lshl_add_u32 v{vT}, v{vT}, 10, v{vT+1}
            buffer_load_dword v{vPOLL}, v{vT}, {sr(sWO)}, s{sKSO} offen
            """)
        A(f"{self.m0(XSL[0])}\ns_branch L_pairs")
        self.seg("bf", m)

    def kreads(self, slot, half):
        return [f"ds_read_b128 {ar(aK+16*u+4*s)}, v{vKR+s} offset:{slot*SLOT+8192*half+4096*u}" for s in range(4) for u in range(2)]
    def vreads(self, slot, half):
        return [f"ds_read_b64_tr_b16 {ar(aV+4*db+2*a,2)}, v{vVR+db} offset:{slot*SLOT+8192*half+4096*a}" for db in range(8) for a in range(2)]
    def qks(self, S, zero=False):
        return [f"{MF} {vr(S+8*u+4*q)}, {ar(aK+16*u+4*s)}, {vr(vQ+16*q+4*s)}, " + (vr(S + 8 * u + 4 * q) if s else "0" if zero else vr(vCI + 4 * q))
                for s in range(4) for u in range(2) for q in range(self.NQ)]
    def pvs(self):
        r = []
        for q in range(self.NQ):
            r.append(f"{MF} {vr(vL+4*q)}, {vr(vONE)}, {vr(vP+4*q)}, {vr(vL+4*q)}")
            r += [f"{MF} {vr(vO+8*db+4*q)}, {ar(aV+4*db)}, {vr(vP+4*q)}, {vr(vO+8*db+4*q)}" for db in range(8)]
        return r
    def sregs(self, S, q): return [S + 8 * u + 4 * q + i for u in range(2) for i in range(4)]
    def max8(self, S, q, d):
        r = self.sregs(S, q)
        return [f"v_max3_f32 v{d}, v{r[0]}, v{r[1]}, v{r[2]}", f"v_max3_f32 v{d}, v{d}, v{r[3]}, v{r[4]}",
                f"v_max3_f32 v{d}, v{d}, v{r[5]}, v{r[6]}", f"v_max_f32 v{d}, v{d}, v{r[7]}"]
    def check(self, S):
        a = self.max8(S, 0, vMX0)
        if self.NQ == 2:
            b = self.max8(S, 1, vMX1)
            a = [a[0], b[0], a[1], b[1], a[2], b[2], b[3], f"v_max3_f32 v{vMX0}, v{vMX0}, v{self.sregs(S,0)[7]}, v{vMX1}"]
        return a + [f"v_cmp_lt_f32 vcc, {f2u(self.T):#x}, v{vMX0}"]
    def softmax(self, S, q):
        r = self.sregs(S, q)
        e = [f"v_exp_f32 v{x}, v{x}" for x in r]
        c = [f"v_cvt_pk_bf16_f32 v{vP+4*q+k}, v{r[2*k]}, v{r[2*k+1]}" for k in range(4)]
        return e, c
    def sec_P(self, Sdone, Schk, k, v, dma, tag, bar=True):
        A = self.A; NQ = self.NQ
        A("s_waitcnt lgkmcnt(0)")
        b = ["s_waitcnt vmcnt(12)", "s_barrier"] if bar else []
        if bar and self.lim:
            b = [f"s_cmp_ge_u32 s{sT}, s{sLIM}\ns_cbranch_scc1 L_lim{tag}_{NQ}\ns_waitcnt vmcnt({self.limw})\nL_lim{tag}_{NQ}:"] + b
        k = [[x] for x in k] if k else [[]] * 8
        d = [[x] for x in dma] if dma else [[]] * 5
        x = self.check(Schk)
        if NQ == 2:
            f, c = self.softmax(Sdone, 1)
            g = [b + k[0] + c[1:2], d[0] + f[4:5], k[1] + k[2], f[5:6], k[3] + c[2:3], f[6:7], f[7:8], k[4] + c[3:4],
                 k[5] + x[0:1], k[6] + x[1:2], k[7] + x[2:3], v[0:1] + x[3:4], v[1:2] + d[1] + x[4:5], v[2:3] + x[5:6],
                 v[3:4] + x[6:7], v[4:5] + x[7:8], v[5:6] + x[8:9], v[6:8]]
        else:
            g = [b + k[0], k[1] + d[0] + v[0:2], k[2] + v[2:4], k[3] + d[1] + v[4:6], k[4] + v[6:8] + x[0:1], k[5] + x[1:2],
                 k[6] + x[2:3], k[7] + x[3:4], x[4:5]]
        self.weave(self.pvs(), g)
        A(f"s_cbranch_vccnz L_rs_{tag}_{NQ}\nL_rsb_{tag}_{NQ}:")

    def sec_Q(self, Snew, S, v, dma, tail=(), first=False):
        NQ = self.NQ
        e, c = self.softmax(S, 0)
        d = [[x] for x in dma] if dma else [[]] * 3
        t = list(tail) + [[]] * 2
        v = v[-8:]
        if NQ == 2:
            f, cc = self.softmax(S, 1)
            g = [e[0:1], e[1:2], v[0:2], e[2:3], e[3:4], v[2:4] + c[0:1], e[4:5], e[5:6], v[4:6] + c[1:2], e[6:7], e[7:8],
                 v[6:8] + c[2:3], f[0:1] + c[3:4], d[0] + f[1:2], d[1] + t[0] + f[2:3], d[2] + t[1] + f[3:4] + cc[0:1]]
            if self.dpos == 1:
                g[0] = d[0] + g[0]; g[6] = d[1] + g[6]; g[13] = d[2] + f[1:2]; g[14] = f[2:3]
                g[15] = t[0] + t[1] + f[3:4] + cc[0:1]
        else:
            g = [v[0:2] + e[0:2], v[2:4] + e[2:3] + c[0:1], v[4:6] + e[3:5], v[6:8] + c[1:2] + e[5:6], d[0] + e[6:7] + c[2:3],
                 d[1] + e[7:8], d[2] + t[0] + c[3:4], t[1] + ["s_nop 0"]]
        self.weave(self.qks(Snew), g)

    def allmax(self, regs):
        r = []
        for op in ("v_permlane32_swap_b32", "v_permlane16_swap_b32"):
            r += [f"v_mov_b32 v{vT+i}, v{x}" for i, x in enumerate(regs)] + ["s_nop 1"]
            r += [f"{op} v{x}, v{vT+i}" for i, x in enumerate(regs)]
            r += [f"v_max_f32 v{x}, v{x}, v{vT+i}" for i, x in enumerate(regs)]
        return r
    def rescale(self):
        A = self.A; NQ = self.NQ
        for tag in range(13): A(f"L_rs_{tag}_{NQ}:\ns_mov_b32 s{sT0}, {tag}\ns_branch L_rs{'BA'[tag%2]}_{NQ}")
        for S, n, tags in ((vSA, "A", list(range(1, 13, 2))), (vSB, "B", list(range(0, 13, 2)))):
            m = self.mark()
            A(f"L_rs{n}_{NQ}:")
            mx = [vMX0, vMX1][:NQ]
            for q in range(NQ): self.emit(self.max8(S, q, mx[q]))
            self.emit(self.allmax(mx))
            for q in range(NQ): A(f"v_max_f32 v{mx[q]}, 0, v{mx[q]}\nv_sub_f32 v{vT+q}, 0, v{mx[q]}\nv_exp_f32 v{vT+q}, v{vT+q}")
            for q in range(NQ):
                for x in self.sregs(S, q) + [vCI + 4 * q + i for i in range(4)]: A(f"v_sub_f32 v{x}, v{x}, v{mx[q]}")
            for q in range(NQ):
                for x in [vL + 4 * q + i for i in range(4)] + [vO + 8 * db + 4 * q + i for db in range(8) for i in range(4)]:
                    A(f"v_mul_f32 v{x}, v{x}, v{vT+q}")
            self.seg(f"rs{n}{NQ}", m)
            for t in tags[:-1]: A(f"s_cmp_eq_u32 s{sT0}, {t}\ns_cbranch_scc1 L_rsb_{t}_{NQ}")
            A(f"s_nop 0\ns_branch L_rsb_{tags[-1]}_{NQ}")

    def attn_prologue(self):
        A = self.A; NQ = self.NQ
        self.emit(self.stamp(2))
        A(f"s_waitcnt vmcnt({self.younger('K0')})\ns_barrier")
        self.emit(self.kreads(0, 0))
        for it in self.kvsched.get(8, []):
            su, ld, tag = self.kv_item(it); self.vm += [tag] * 4
            self.emit([f"s_cmp_lg_u32 s{sGB}, 0", f"s_cbranch_scc1 L_nok_{NQ}"] + su + ld + [f"L_nok_{NQ}:"])
        qk = self.qks(vSA, True); k1 = self.kreads(0, 1); per = 2 * NQ
        for s in range(5):
            fin = []
            if s < 4:
                for q in range(NQ):
                    src = [qacc(2 * s + h, q) + i for h in range(2) for i in range(4)]
                    fin += [f"v_mul_f32 v{x}, s{sSC}, v{x}" for x in src]
                    fin += [f"v_cvt_pk_bf16_f32 v{vQ+16*q+4*s+k}, v{src[2*k]}, v{src[2*k+1]}" for k in range(4)]
                for op in ("v_permlane32_swap_b32", "v_permlane16_swap_b32"):
                    fin += ["s_nop 1" if NQ == 1 or op[10] == "3" else "s_nop 0"]
                    fin += [f"{op} v{vQ+16*q+4*s+k}, v{vQ+16*q+4*s+2+k}" for q in range(NQ) for k in range(2)]
            else:
                if self.dump == "q": self.dump_regs(vQ)
                fin = [f"v_mov_b32 v{vL+i}, 0" for i in range(4 * NQ)]
            if s == 0: self.emit(fin); continue
            g = self.spread(fin, per)
            if NQ == 1: A("s_nop 0")
            A("s_nop 0")
            for u in range(2): g[u * NQ + NQ - 1].insert(0, k1[2 * (s - 1) + u])
            self.weave(qk[per * (s - 1):per * s], g)
        A(f"s_waitcnt vmcnt({self.younger('V0')})\ns_barrier")
        su, ld = [], []
        for it in self.kvsched.get(9, []):
            su, ld, tag = self.kv_item(it); self.vm += [tag] * 4
        self.emit(self.vreads(0, 0)[:8] + [f"s_cmp_lg_u32 s{sGB}, 0", f"s_cbranch_scc1 L_nov_{NQ}"] + su + ld + [f"L_nov_{NQ}:"])
        mx = [vMX0, vMX1][:NQ]
        for q in range(NQ): self.emit(self.max8(vSA, q, mx[q]))
        self.emit(self.allmax(mx))
        for q in range(NQ):
            for i in range(4): A(f"v_sub_f32 v{vCI+4*q+i}, 0, v{mx[q]}")
        for q in range(NQ):
            for x in self.sregs(vSA, q): A(f"v_sub_f32 v{x}, v{x}, v{mx[q]}")
        self.sec_Q(vSB, vSA, self.vreads(0, 0), None)
        A(f"s_mov_b32 s{sT}, 0\ns_mov_b32 s{sKSO}, {3*SLOT}\ns_mov_b32 s{sVSO}, {3*SLOT}")
        assert self.younger("K1") == 12
        self.emit(self.stamp(3))

    def tile(self, r, tag, da, db, ta=(), tb=()):
        s0, s1 = r, (r + 1) % 3
        self.sec_P(vSA, vSB, self.kreads(s1, 0), self.vreads(s0, 1), [self.m0(s0)] + da[:1], tag)
        self.sec_Q(vSA, vSB, self.vreads(s0, 1), da[1:], [[], list(ta)])
        self.sec_P(vSB, vSA, self.kreads(s1, 1), self.vreads(s1, 0), [self.m0(3 + s0)] + db[:1], tag + 1)
        self.sec_Q(vSB, vSA, self.vreads(s1, 0), db[1:], [[], list(tb)])
    def attn_loop(self):
        A = self.A; NQ = self.NQ
        A(f"L_a_{NQ}:")
        for r in range(3):
            self.tile(r, 2 * r, self.dma_k(), self.dma_v(), [f"s_add_u32 s{sKSO}, s{sKSO}, {SLOT}"],
                      [f"s_add_u32 s{sVSO}, s{sVSO}, {SLOT}"] + ([f"s_add_u32 s{sT}, s{sT}, 1", f"s_cmp_lt_u32 s{sT}, 4"] if r == 2 and self.stamps != "loop" else []))
            if r == 0: A(f"s_call_b64 s[{sRET}:{sRET+1}], L_x")
        if self.stamps == "loop":
            A(f"s_add_u32 s{sT}, s{sT}, 1")
            for k in range(1, 5):
                A(f"s_cmp_eq_u32 s{sT}, {k}\ns_cbranch_scc0 L_ls{k}_{NQ}"); self.emit(self.stamp(10 + k)); A(f"L_ls{k}_{NQ}:")
            A(f"s_cmp_lt_u32 s{sT}, 4")
        A(f"s_cbranch_scc1 L_a_{NQ}\nL_last_{NQ}:")
        so = lambda c: [f"s_mov_b32 s{sKSO}, {c << 17}"]
        wo = lambda: self.dma(vOD, sWO, sKSO, self.wo)
        self.tile(0, 6, self.dma_k(), self.dma_v(), ["v_mov_b32 v2, 0"], [f"buffer_load_dwordx2 {vr(vTAG,2)}, v2, {sr(sDBG)}, 0 offen sc1"] + so(4))
        self.tile(1, 8, wo(), wo(), so(5), so(6))
        self.tile(2, 10, wo(), wo(), so(7), [f"v_and_b32 v1, v{vTAG}, v{vTAG+1}", "v_and_b32 v1, 1, v1"])
        A(f"v_cmp_eq_u32 vcc, 0, v1\ns_cbranch_vccnz L_notag_{NQ}\nL_tag_{NQ}:")

    def loop_extras(self):
        A = self.A
        m = self.mark()
        A(f"""
        L_x:
        s_lshl_b32 s{sT1}, s{sT}, 17
        s_lshl_b32 s{sT0}, s{sT}, 14
        s_add_u32 s{sT0}, s{sT0}, {6*SLOT}
        s_add_u32 m0, s{sT0}, s{sW4K}
        s_or_b32 s{sT0}, s{sT}, s{sAT}
        """)
        self.emit(self.dma(vOD, sWO, sT1, self.wo))
        A(f"""
        s_cbranch_scc0 L_x_tag
        s_cmp_eq_u32 s{sT}, 3
        s_cbranch_scc1 L_x_pf
        s_setpc_b64 s[{sRET}:{sRET+1}]
        L_x_tag:
        s_mov_b32 s{sT0}, 0x9e3779b9
        v_add_co_u32 v{vTAG}, vcc, 0x7f4a7c15, v{vTAG}
        v_mov_b32 v1, s{sT0}
        v_mov_b32 v2, 0
        v_addc_co_u32 v{vTAG+1}, vcc, v1, v{vTAG+1}, vcc
        v_or_b32 v{vTAG}, 1, v{vTAG}
        v_or_b32 v{vTAG+1}, 1, v{vTAG+1}
        s_mov_b64 exec, 1
        buffer_store_dwordx2 {vr(vTAG,2)}, v2, {sr(sDBG)}, 0 offen sc1
        buffer_store_dwordx2 {vr(vTAG,2)}, v{vCNT}, {sr(sWS)}, 0 offen sc1
        s_mov_b64 exec, -1
        s_setpc_b64 s[{sRET}:{sRET+1}]
        L_x_pf:
        """)
        if self.pf:
            A(f"""
            s_getpc_b64 s[{sT0}:{sT1}]
            L_pcref2:
            v_lshlrev_b32 v1, 3, v{vL16}
            v_lshl_add_u32 v1, s{sW}, 13, v1
            v_min_u32 v1, L_tail_end - L_pcref2 - 4, v1
            global_load_dword v{vPOLL}, v1, s[{sT0}:{sT1}]
            """)
        A(f"s_setpc_b64 s[{sRET}:{sRET+1}]")
        self.seg("x", m)
    def notag(self):
        self.A(f"L_notag_{self.NQ}:\nv_mov_b32 v2, 0")
        self.spin(f"L_cnt_{self.NQ}", 2, sDBG, f"v_and_b32 v1, v{vTAG}, v{vTAG+1}\nv_and_b32 v1, 1, v1\nv_cmp_eq_u32 vcc, 0, v1", vTAG)
        self.A(f"s_branch L_tag_{self.NQ}")

    def dump_regs(self, base):
        A = self.A
        A(f"s_lshl_b32 s{sT0}, s{sJ}, 15\ns_add_u32 s{sT0}, s{sT0}, s{sOB}\ns_add_u32 s{sT1}, s{sT0}, 4096\ns_nop 1")
        for i in range(4 * self.NQ):
            A(f"buffer_store_dwordx4 {vr(base+4*i)}, v{vL16}, {sr(sWS)}, s{sT0 if i < 4 else sT1} offen offset:{1024*(i%4)}")
        A("s_waitcnt vmcnt(0)\ns_endpgm")

    def spin(self, label, vaddr, srd, cmp, dst=vPOLL):
        self.A(f"""
        s_mov_b32 s{sSPIN}, 0
        {label}:
        buffer_load_dwordx2 {vr(dst,2)}, v{vaddr}, {sr(srd)}, 0 offen {self.fld}
        s_add_u32 s{sSPIN}, s{sSPIN}, 1
        s_cmp_gt_u32 s{sSPIN}, {self.spinmax}
        s_cbranch_scc1 {label}_out
        s_waitcnt vmcnt(0)
        {cmp}
        s_cbranch_vccz {label}_out
        {f"s_sleep {self.sleep}" if self.sleep else ""}
        s_branch {label}
        {label}_out:
        """)

    def select(self, p, block):
        r = [f"s_and_b32 s{sT0}, s{sRDY}, s{sPEND}"]
        if block:
            r[0] += f"\ns_cbranch_scc0 L_sel{p}_{self.NQ}\nL_sel{p}_{self.NQ}_go:"
            self.polls.append(f"{p}_{self.NQ}")
        r += [f"s_ff1_i32_b32 s{sT0}, s{sT0}", f"s_bitset0_b32 s{sPEND}, s{sT0}",
              f"s_add_u32 s{sT0}, s{sT0}, s{sJ}", f"s_and_b32 s{sT0}, s{sT0}, 7", f"s_lshl_b32 s{sT1}, s{sT0}, 15",
              f"s_add_u32 s{sO0}, s{sT1}, s{sOB}", f"s_add_u32 s{sO0+1}, s{sO0}, 4096",
              f"s_lshl_b32 s{sT1}, s{sT0}, 2", f"s_lshr_b32 s{sT1}, 0x52419876, s{sT1}",
              f"s_and_b32 s{sT1}, s{sT1}, 15", f"s_lshl_b32 s{sSL+p%3}, s{sT1}, 14"]
        return r
    def poll_blocks(self):
        for p in self.polls:
            self.A(f"""
            L_sel{p}:
            s_mov_b32 s{sSPIN}, 0
            L_sel{p}_l:
            buffer_load_dwordx2 {vr(vPOLL,2)}, v{vF1P}, {sr(sWS)}, 0 offen {self.fld}
            s_add_u32 s{sSPIN}, s{sSPIN}, 1
            s_waitcnt vmcnt(0)
            v_cmp_eq_u64 vcc, {vr(vTAG,2)}, {vr(vPOLL,2)}
            s_cmp_gt_u32 s{sSPIN}, {self.spinmax}
            s_cselect_b32 s{sRDY}, -1, vcc_lo
            s_and_b32 s{sT0}, s{sRDY}, s{sPEND}
            s_cbranch_scc1 L_sel{p}_go
            {f"s_sleep {self.sleep1}" if self.sleep1 else ""}
            s_branch L_sel{p}_l
            """)

    def woreads(self, n):
        s, hb, st = (n % 8) // 2, (n % 2) ^ (n >= 62), n % 4
        return [f"ds_read_b64_tr_b16 {ar(224+8*st+4*k+2*a,2)}, v{vOR+2*hb+k} offset:{s*4096+a*2048}" for k in range(2) for a in range(2)]
    def oload(self, i, k):
        s, q = k // self.NQ, k % self.NQ
        return f"buffer_load_dwordx4 {ar(32*(i-1)+16*q+4*s)}, v{vL16}, {sr(sWS)}, s{sO0+q} offen offset:{1024*s} sc1"
    def ostep(self, n, vm=None, extra=(), reads=True, adv=True):
        NQ = self.NQ; i, s, hb = n // 8, (n % 8) // 2, (n % 2) ^ (n >= 62)
        if vm is not None: self.A(f"s_waitcnt vmcnt({vm})")
        rd = self.woreads(n + 2) if n + 2 < 64 and reads else []
        mf = []
        for k in ((0, 1) if n < 63 else (1, 0)):
            for q in range(NQ):
                y = vr(vY + 8 * (2 * hb + k) + 4 * q)
                B = vr(vQ + 16 * q + 4 * s) if i == 0 else ar(32 * (i - 1) + 16 * q + 4 * s)
                mf.append(f"{MF} {y}, {ar(224+8*(n%4)+4*k)}, {B}, {'0' if n < 2 else y}")
        g = self.spread(rd, 2 * NQ); x = self.spread(list(extra), 2 * NQ)
        g = [a + b for a, b in zip(g, x)]
        if adv and n % 8 in (4, 5) and n // 8 < 7 and reads:
            g[-1] += [f"v_add_u32 v{vOR+2*hb+k}, s{sSL+(i+1)%3}, v{vORB+2*hb+k}" for k in range(2)]
        self.weave(mf, g)
    @property
    def PUBLISH1(self): return [f"s_mov_b64 exec, {0xfe if self.flags[0] == 'o' else 1}", f"buffer_store_dwordx2 {vr(vTAG,2)}, v{vFOWN}, {sr(sWS)}, 0 offen {self.fst}", "s_mov_b64 exec, -1"]

    def tail(self):
        A = self.A; NQ = self.NQ; NL = 4 * NQ
        poll = f"buffer_load_dwordx2 {vr(vPOLL,2)}, v{vF1P}, {sr(sWS)}, 0 offen {self.fld}"
        self.emit(self.stamp(4))
        p0 = "s_nop 0"
        if self.pollpos == 0: A(poll)
        self.sec_P(vSA, vSB, None, self.vreads(0, 1), None, 12, bar=False)
        if self.pollpos == 1: A(poll)
        if self.pollpos == 2: p0 = poll
        e, c = self.softmax(vSB, 0)
        self.emit(self.vreads(0, 1)[8:] + e[0:3] + c[0:1] + e[3:5] + c[1:2] + e[5:7] + c[2:3] + e[7:8])
        self.emit([f"s_lshl_b32 s{sT0}, s{sJ}, 15"] + c[3:4] + [f"s_add_u32 s{sT0}, s{sT0}, s{sOB}", f"s_add_u32 s{sT1}, s{sT0}, 4096"])
        def norm(q, packed):
            r = []
            for s in range(4):
                src = [vO + 8 * (2 * s + h) + 4 * q + i for h in range(2) for i in range(4)]
                for k in range(4):
                    if 4 * s + k >= packed: r.append(f"v_pk_mul_f32 {vr(src[2*k],2)}, {vr(src[2*k],2)}, {vr(vT+2*q,2)}")
                    else: r += [f"v_mul_f32 v{x}, v{x}, v{vT+2*q}" for x in src[2 * k:2 * k + 2]]
                    r.append(f"v_cvt_pk_bf16_f32 v{vQ+16*q+4*s+k}, v{src[2*k]}, v{src[2*k+1]}")
                r.append(f"buffer_store_dwordx4 {vr(vQ+16*q+4*s)}, v{vL16}, {sr(sWS)}, s{sT0+q} offen offset:{1024*s} sc1")
            return r
        oa = [f"v_add_u32 v{vOR+k}, s{sSL}, v{vORB+k}" for k in range(4)]
        if NQ == 2:
            f, d = self.softmax(vSB, 1)
            n0 = norm(0, 6)
            g = self.spread(f[0:3] + d[0:1] + f[3:5] + d[1:2] + f[5:7] + d[2:3] + f[7:8], 7) + [d[3:4] + [f"v_rcp_f32 v{vT}, v{vL}"], [p0, f"v_mov_b32 v{vT+1}, v{vT}"]]
            g += [[]] + self.spread(n0[:19], 8)
            self.weave(self.pvs(), g)
            self.emit([f"v_rcp_f32 v{vT+2}, v{vL+4}"] + oa + [f"v_mov_b32 v{vT+3}, v{vT+2}"] + n0[19:] + norm(1, 0))
        else:
            self.weave(self.pvs(), [[], [], [], [], [p0], oa[:2], oa[2:], ["s_nop 0"], [f"v_rcp_f32 v{vT}, v{vL}", "s_nop 3"]])
            self.emit([f"v_mov_b32 v{vT+1}, v{vT}"] + norm(0, 0))
        self.emit(self.stamp(5))
        A(f"""
        s_waitcnt vmcnt({NL})
        v_cmp_eq_u64 vcc, {vr(vTAG,2)}, {vr(vPOLL,2)}
        s_mov_b32 s{sPEND}, 0xfe
        s_barrier
        s_and_b32 s{sRDY}, vcc_lo, 0xfe
        """)
        self.emit(self.woreads(0) + self.woreads(1))
        if self.dump == "o": A("s_waitcnt vmcnt(0)\ns_endpgm")
        A(f"s_bcnt1_i32_b32 s{sT0}, s{sRDY}\ns_cmp_ge_u32 s{sT0}, {self.nfast}\ns_cbranch_scc0 L_slow_{NQ}\nL_fast_{NQ}:")
        look = [f"v_cmp_eq_u64 vcc, {vr(vTAG,2)}, {vr(vPOLL,2)}", "s_nop 0", f"s_or_b32 s{sRDY}, s{sRDY}, vcc_lo"]
        if self.apoll: A(poll)
        for p in (1, 2):
            self.emit(self.select(p, False))
            for n in range(4): self.ostep(4 * (p - 1) + n, extra=[self.oload(p, NQ * n + q) for q in range(NQ)])
        A(f"s_waitcnt vmcnt({2*NL})")
        self.emit(self.PUBLISH1 + (look if self.apoll else []))
        A(f"L_common_{NQ}:")
        self.emit(self.stamp(6))
        prep = [f"s_lshl_b32 s{sD}, s{sG}, 11", f"s_add_u32 s{sD}, s{sD}, s{sPBs}"]
        for v in (1, 2, 3): prep += [f"s_xor_b32 s{sT0}, s{sG}, {v}", f"s_lshl_b32 s{sT1}, s{sT0}, 13", f"s_add_u32 s{sN0+v-1}, s{sT1}, s{sD}", f"s_lshl_b32 s{sRO[v-1]}, s{sT0}, 11"]
        prep += [f"s_lshl_b32 s{sD}, s{sG}, 13", f"s_add_u32 s{sD}, s{sD}, s{sPBs}"] + [f"s_add_u32 s{x}, s{x}, s{sD}" for x in sRO]
        prep += [f"v_mov_b32 v{vGS+8*v+4*q+1+2*k}, v{vTAG+k}" for v in range(3) for q in range(NQ) for k in range(2)]
        if self.prepoll: prep += [f"v_mov_b32 v{vF2P}, s{sRO[0]}", f"v_writelane_b32 v{vF2P}, s{sRO[1]}, 1", f"v_writelane_b32 v{vF2P}, s{sRO[2]}, 2",
                 f"v_add_u32 v{vF2P}, {1024*(NQ-1)+self.probe}, v{vF2P}"]
        prep = self.spread(prep, 8)
        vm = [(1, k) for k in range(NL)] + [(2, k) for k in range(NL)]
        for i in range(1, 8):
            sel = self.select(i + 2, True) if i < 6 else []
            ld = self.spread([(i + 2, k) for k in range(NL)] if i < 6 else [], 8, 2)
            for h in range(8):
                need = [(i, NQ * (h // 2) + NQ - 1)] if h % 2 == 0 else []
                ex = [self.oload(*x) for x in ld[h]]
                if h == 0:
                    ex = sel[:6]
                    if 2 <= i < 6 and self.apoll: need.append(("poll", i - 1)); ex = ["\n".join(look + sel[:1])] + sel[1:6]
                if h == 1:
                    ex = sel[6:]
                    if i < 5 and self.apoll: ex = ex + [poll]; ld[1] = [("poll", i)]
                if i == 6 and self.gran: ex = ex + prep[h]
                w = min(len(vm) - 1 - vm.index(x) for x in need) if need else None
                self.ostep(8 * i + h, w, extra=ex)
                vm += ld[h]
        self.emit(self.stamp(7))
        if self.gran: self.exchange_tagged()
        else: self.exchange_flagged()
        if self.eps:
            for i in range(4 * NQ): A(f"v_mul_f32 v{vY+i}, {f2u(1+self.eps):#x}, v{vY+i}")
        for i in range(2 * NQ): A(f"v_cvt_pk_bf16_f32 v{vP+i}, v{vY+2*i}, v{vY+2*i+1}")
        A(f"""
        s_nop 1
        v_permlane16_swap_b32 v{vP}, v{vP+2}
        v_permlane16_swap_b32 v{vP+1}, v{vP+3}
        buffer_store_dwordx4 {vr(vP)}, v{vOUTA}, {sr(sOUT)}, 0 offen
        """)
        if self.stamps and NQ == 2:
            A("s_waitcnt vmcnt(0)")
            self.emit(self.stamp(10))
            A(f"""
            s_waitcnt lgkmcnt(0)
            s_cmp_lg_u32 s{sW}, 0
            s_cbranch_scc1 L_end
            s_add_u32 s{sX}, s18, {STAMP_OFF}
            s_addc_u32 s{sX+1}, s19, 0
            s_mov_b32 s{sX+2}, 0x100000
            s_lshl_b32 s{sT0}, s2, 8
            v_mov_b32 v4, s{sT0}
            s_mov_b64 exec, 1
            """)
            if self.stamps == "dbg":
                A(f"s_cmp_lg_u32 s2, 37\ns_cbranch_scc1 L_end\nv_mov_b32 v5, 0")
                for i in range(self.nst):
                    A(f"s_sub_u32 s{sT0}, s{STAMP0+2*i}, s{STAMP0}\nv_mov_b32 v2, s{sT0}\nbuffer_store_dword v2, v5, {sr(sDBG)}, 0 offen offset:{8+4*i}\ns_nop 1")
            for i in range(self.nst):
                A(f"v_mov_b32 v2, s{STAMP0+2*i}\nv_mov_b32 v3, s{STAMP0+2*i+1}\nbuffer_store_dwordx2 v[2:3], v4, {sr(sX)}, 0 offen offset:{8*i}\ns_nop 1")
        A("L_end:\ns_endpgm" if NQ == 2 else "s_endpgm")
    def exchange_flagged(self):
        A = self.A; NQ = self.NQ
        A(f"s_lshl_b32 s{sD}, s{sG}, 11\ns_add_u32 s{sD}, s{sD}, s{sPBs}")
        for v in (1, 2, 3):
            A(f"s_xor_b32 s{sT0}, s{sG}, {v}\ns_lshl_b32 s{sT0}, s{sT0}, 13\ns_add_u32 s{sN0+v-1}, s{sT0}, s{sD}")
        for v in (1, 2, 3):
            for q in range(NQ):
                A(f"buffer_store_dwordx4 {vr(vY+8*v+4*q)}, v{vL16}, {sr(sWS)}, s{sN0+v-1} offen offset:{1024*q} sc1")
        A(f"s_lshl_b32 s{sD}, s{sG}, 13\ns_add_u32 s{sD}, s{sD}, s{sPBs}")
        for v in (1, 2, 3):
            A(f"s_xor_b32 s{sT0}, s{sG}, {v}\ns_lshl_b32 s{sT0}, s{sT0}, 11\ns_add_u32 s{sN0+v-1}, s{sT0}, s{sD}")
        A(f"""
        s_waitcnt vmcnt(0)
        s_mov_b64 exec, {0xe if self.flags[1] == 'o' else 2}
        buffer_store_dwordx2 {vr(vTAG,2)}, v{vF2S}, {sr(sWS)}, 0 offen {self.fst}
        s_mov_b64 exec, -1
        """)
        self.emit(self.stamp(8))
        self.spin(f"L_p2_{NQ}", vF2P, sWS, f"v_cmp_ne_u64 vcc, {vr(vTAG,2)}, {vr(vPOLL,2)}")
        self.emit(self.stamp(9))
        for v in (1, 2, 3):
            for q in range(NQ):
                A(f"buffer_load_dwordx4 {vr(vY+8*v+4*q)}, v{vL16}, {sr(sWS)}, s{sN0+v-1} offen offset:{1024*q} sc1")
        for v in (1, 2, 3):
            A(f"s_waitcnt vmcnt({NQ*(3-v)})")
            for i in range(4 * NQ): A(f"v_add_f32 v{vY+i}, v{vY+i}, v{vY+8*v+i}")

    def exchange_tagged(self):
        A = self.A; NQ = self.NQ
        A(f"s_mov_b32 s{sPEND}, 7\ns_mov_b32 s{sSPIN}, 0\ns_nop {1 if NQ == 2 else 3}")
        for v in (2, 3, 1):
            for q in range(NQ):
                y = vY + 8 * v + 4 * q; g = vGS + 8 * (v - 1) + 4 * q
                A(f"v_cvt_pk_bf16_f32 v{g}, v{y}, v{y+1}\nv_cvt_pk_bf16_f32 v{g+2}, v{y+2}, v{y+3}")
                A(f"buffer_store_dwordx4 {vr(g)}, v{vL16}, {sr(sWS)}, s{sN0+v-1} offen offset:{1024*q} sc1")
        self.emit(self.stamp(8))
        if not self.prepoll:
            A(f"""
            s_branch L_g1_{NQ}
            L_g_{NQ}:
            s_add_u32 s{sSPIN}, s{sSPIN}, 1
            s_cmp_gt_u32 s{sSPIN}, {self.spinmax}
            s_cbranch_scc1 L_gd_{NQ}
            {f"s_sleep {self.sleep}" if self.sleep else ""}
            L_g1_{NQ}:
            s_mov_b32 s{sRDY}, s{sPEND}
            """)
        else: A(f"""
        L_g_{NQ}:
        buffer_load_dword v1, v{vF2P}, {sr(sWS)}, 0 offen sc1
        s_add_u32 s{sSPIN}, s{sSPIN}, 1
        s_waitcnt vmcnt(0)
        v_cmp_eq_u32 vcc, v{vTAG+1}, v1
        s_cmp_gt_u32 s{sSPIN}, {self.spinmax}
        s_cbranch_scc1 L_gd_{NQ}
        s_and_b32 s{sRDY}, vcc_lo, s{sPEND}
        s_cbranch_scc0 L_g_{NQ}
        """)
        for v in range(3):
            A(f"s_bitcmp1_b32 s{sRDY}, {v}\ns_cbranch_scc0 L_gl{v}_{NQ}")
            for q in range(NQ): A(f"buffer_load_dwordx4 {vr(vGR+8*v+4*q)}, v{vL16}, {sr(sWS)}, s{sRO[v]} offen offset:{1024*q} sc1")
            A(f"L_gl{v}_{NQ}:")
        A("s_waitcnt vmcnt(0)")
        for v in range(3):
            r = vGR + 8 * v
            A(f"s_bitcmp1_b32 s{sRDY}, {v}\ns_cbranch_scc0 L_gc{v}_{NQ}")
            A(f"v_xor_b32 v1, v{vTAG}, v{r+1}\nv_xor_b32 v2, v{vTAG+1}, v{r+3}")
            if NQ == 2: A(f"v_xor_b32 v3, v{vTAG}, v{r+5}\nv_xor_b32 v4, v{vTAG+1}, v{r+7}\nv_or3_b32 v1, v1, v3, v4")
            A(f"v_or_b32 v1, v1, v2\nv_cmp_ne_u32 vcc, 0, v1\ns_cbranch_vccnz L_gc{v}_{NQ}\ns_bitset0_b32 s{sPEND}, {v}")
            for k in range(2 * NQ):
                A(f"v_lshlrev_b32 v1, 16, v{r+2*k}\nv_and_b32 v2, 0xffff0000, v{r+2*k}\nv_add_f32 v{vY+2*k}, v{vY+2*k}, v1\nv_add_f32 v{vY+2*k+1}, v{vY+2*k+1}, v2")
            A(f"L_gc{v}_{NQ}:")
        A(f"""
        s_cmp_lg_u32 s{sPEND}, 0
        s_cbranch_scc1 L_g_{NQ}
        L_gd_{NQ}:
        """)
        self.emit(self.stamp(9))

    def tail_slow(self):
        A = self.A; NQ = self.NQ
        A(f"L_slow_{NQ}:\ns_waitcnt lgkmcnt(0)")
        for n in range(8): self.ostep(n, reads=n < 6, adv=False)
        A(f"buffer_load_dwordx2 {vr(vPOLL,2)}, v{vF1P}, {sr(sWS)}, 0 offen {self.fld}\ns_waitcnt vmcnt(1)")
        self.emit(self.PUBLISH1)
        A(f"s_waitcnt vmcnt(1)\nv_cmp_eq_u64 vcc, {vr(vTAG,2)}, {vr(vPOLL,2)}\ns_nop 0\ns_mov_b32 s{sRDY}, vcc_lo")
        self.emit(self.select(1, True))
        for k in range(4 * NQ): A(self.oload(1, k))
        for k in range(4): A(f"v_add_u32 v{vOR+k}, s{sSL+1}, v{vORB+k}")
        self.emit(self.woreads(8) + self.woreads(9))
        self.emit(self.select(2, True))
        for k in range(4 * NQ): A(self.oload(2, k))
        A(f"s_branch L_common_{NQ}")

    def capture(self, *fs):
        m = self.mark()
        for f in fs: f()
        r = self.A.l[m:]; del self.A.l[m:]
        return r
    def path(self, NQ):
        self.NQ = NQ; vm0 = list(self.vm)
        main = autowait(self.capture(self.qphase, self.attn_prologue, self.attn_loop, lambda: self.A(f"L_tail_{NQ}:"), self.tail))
        slow = autowait(self.capture(self.tail_slow))
        rare = self.capture(self.rescale, self.notag)
        self.vm = vm0
        ix = lambda lab: [l.strip() for l in main].index(lab)
        la, ll, le, lf, lc = ix(f"L_a_{NQ}:"), ix(f"L_last_{NQ}:"), ix(f"L_tail_{NQ}:"), ix(f"L_fast_{NQ}:"), ix(f"L_common_{NQ}:")
        errs = hazard.check(self.segs["pro"] + main[:ll] + main[la:], f"main{NQ}")
        errs += hazard.check(main[le:lf] + slow + main[lc:], f"slow{NQ}")
        out = []
        for l in main[la:lf]:
            out.append(l)
            mm = re.match(r"s_cbranch_vccnz L_rs_(\d+)_", l.strip())
            if mm: out += ["s_nop 0", "s_nop 0"] + self.segs[f"rs{'BA'[int(mm.group(1))%2]}{NQ}"] + ["s_nop 0", "s_nop 0"]
        errs += hazard.check(out, f"rare{NQ}")
        return errs, main[:ll] + [f"    s_branch L_last_{NQ}"], main[ll:] + slow, rare

    def build(self):
        self.polls = []
        m = self.mark(); self.prologue(); self.seg("pro", m)
        errs, hot, tail, rare = self.path(2)
        if self.one:
            e1, h1, t1, r1 = self.path(1)
            errs += e1; hot += ["L_one:"] + h1; tail += t1; rare += r1
        if self.stag is not None:
            b = self.capture(self.bfirst)
            i = hot.index("L_one:") if self.one else len(hot)
            hot[i:i] = b
            errs += [e for e in hazard.check(b, "bfirst") if "pending" not in e]
        self.A.l += hot
        self.loop_extras()
        self.A("L_hot_end:")
        self.A.l += tail
        self.poll_blocks()
        self.A("L_tail_end:")
        self.A.l += rare
        errs += [e for e in hazard.check(self.segs["x"], "extras") if f"{vTAG}" not in e and f"{vPOLL}" not in e]
        errs = [e for e in errs if f"buffer_load_dword v{vMX1}, v{vMX1}" not in e]
        for e in sorted(set(errs)): print("HAZARD", e, file=sys.stderr)
        assert self.nst <= 13
        return kernel_file([(KN, 256, 256, 10 * SLOT)], {KN: (self.A.text(), 512, 256, 102)})

if __name__ == "__main__":
    import argparse
    ap = argparse.ArgumentParser()
    ap.add_argument("-o", default="main.s"); ap.add_argument("--stamps", nargs="?", const="ws", default=None)
    ap.add_argument("--kv", default="nt"); ap.add_argument("--xw", default=""); ap.add_argument("--wo", default="")
    ap.add_argument("--dump", default=None); ap.add_argument("-T", type=float, default=8.0)
    ap.add_argument("--nopf", action="store_true"); ap.add_argument("--nodma", action="store_true")
    ap.add_argument("--sleep", type=int, default=1); ap.add_argument("--noone", action="store_true")
    ap.add_argument("--nowopf", action="store_true"); ap.add_argument("--dpos", type=int, default=1)
    ap.add_argument("--stag", type=int, default=None); ap.add_argument("--bpf", default="ok")
    ap.add_argument("--lim", type=lambda x: int(x, 16), default=0); ap.add_argument("--limw", type=int, default=8)
    ap.add_argument("--map", default="4x8"); ap.add_argument("--wosteps", default="4444")
    ap.add_argument("--warm", action="store_true"); ap.add_argument("--sleep1", type=int, default=4); ap.add_argument("--flags", default="so"); ap.add_argument("--fld", default="sc1"); ap.add_argument("--fst", default="sc1")
    ap.add_argument("--gran", action="store_true")
    ap.add_argument("--probe", type=int, default=1020)
    ap.add_argument("--apoll", action="store_true"); ap.add_argument("--prepoll", action="store_true"); ap.add_argument("--eps", type=float, default=0)
    ap.add_argument("--kvs", type=int, default=0)
    ap.add_argument("--rot", default="24")
    ap.add_argument("--pollpos", type=int, default=1); ap.add_argument("--nfast", type=int, default=2)
    a = ap.parse_args()
    g = Gen(stamps=a.stamps, kv=a.kv, xw=a.xw, wo=a.wo, dump=a.dump, T=a.T, pf=not a.nopf, nodma=a.nodma, sleep=a.sleep, one=not a.noone, wopf=not a.nowopf, dpos=a.dpos, stag=a.stag, bpf=a.bpf, lim=a.lim, limw=a.limw, map=a.map, wosteps=tuple(int(x) for x in a.wosteps), flags=a.flags, warm=a.warm, sleep1=a.sleep1, gran=a.gran, probe=a.probe, apoll=a.apoll, prepoll=a.prepoll, eps=a.eps, kvs=a.kvs, rot=a.rot, pollpos=a.pollpos, nfast=a.nfast, fld=a.fld, fst=a.fst)
    open(a.o, "w").write(g.build())
    print("stamps:", g.nst)
```

```python
import sys, math, struct, re
from asmlib import *
import hazard

STAMP_OFF = 240 << 20
SLOT = 16384
PB = 8 << 20
F1 = 16 << 20
F2 = F1 + (128 << 10)
EPOCH = F2 + (128 << 10)
WS_SIZE = EPOCH + 128
SCALE = math.log2(math.e) / math.sqrt(128.0)
def f2u(x): return struct.unpack("<I", struct.pack("<f", x))[0]

sX, sWQ, sK, sV, sWO, sWS, sOUT, sDBG = 20, 24, 28, 32, 36, 40, 44, 48
sW, sB, sH, sJ, sG, sW4K, sCC, sT = 52, 53, 54, 55, 56, 57, 58, 59
sT0, sT1 = 60, 61
sRET = 62
sKSO, sVSO = 64, 65
sN0 = 66
sD = 69
sSC = 70
sXM = 71
sAT = 72
sOB = 73
sPBs = 74
sSPIN = 75
sRO = (64, 65, 71)
sGB = 3
sLIM = 14
sW4B = 6
sSOA, sSOB = 4, 5
sRDY, sPEND = 7, 8
sSL = 9
sO0 = 12
STAMP0 = 76
vKR, vVR, vKD, vVD, vXD, vWD, vOD, vORB, vOR = 8, 12, 20, 24, 28, 32, 36, 40, 44
vMX0, vMX1 = 48, 49
vCNT, vF1P, vF2P, vL16, vOUTA, vFOWN = 50, 51, 52, 53, 54, 55
vONE = 56; vT = 60
vTAG = 184
vPOLL = 186
vF2S = 188
vGS, vGR = 128, 152
vO, vSA, vSB, vCI, vL, vP, vQ, vY = 64, 128, 144, 160, 168, 176, 192, 224
vWR, vXR = 128, 144
def qacc(db, q): return (160 + 8 * db if db < 3 else 148 if db == 3 else 192 + 8 * db) + 4 * q
aK, aV = 0, 32
XSL, WSL = (1, 2, 6, 8), (4, 5, 7, 9)
def vr(b, n=4): return f"v[{b}:{b+n-1}]"
def ar(b, n=4): return f"a[{b}:{b+n-1}]"
def sr(b, n=4): return f"s[{b}:{b+n-1}]"
MF = "v_mfma_f32_16x16x32_bf16"

def autowait(lines, slack=20):
    out = []; q = []; n = 0
    for l in lines:
        d = hazard.parse(l)
        if d is None: out.append(l); continue
        if d["mn"] == "s_waitcnt":
            m = re.search(r"lgkmcnt\((\d+)\)", d["text"])
            if m: q = q[max(0, len(q) - int(m.group(1))):]
        else:
            use = set(d["r"]) | set(d["w"])
            need = max([i for i, (w, _) in enumerate(q) if use & w], default=-1)
            if need >= 0:
                while need + 1 < len(q) and n - q[need + 1][1] >= slack: need += 1
                need = max(need, len(q) - 16)
                left = len(q) - 1 - need
                prev = out[-1].strip()
                if prev.startswith("s_waitcnt vmcnt") and "lgkm" not in prev: out[-1] = out[-1] + f" lgkmcnt({left})"
                else: out.append(f"    s_waitcnt lgkmcnt({left})")
                q = q[need + 1:]
            if d["kind"] == "ds": q.append((set(d["w"]), n))
        out.append(l); n += 1
    return out

NOTES = """; One workgroup per (batch, head), four waves holding 2/2/2/1 blocks of 16 queries (written by my generator script).
;  1. Q^T = Wq_h^T x_b^T through LDS (LDS-DMA, transposing reads), scaled by log2(e)/sqrt(128) and rounded to bf16.
;     max (O, l rescaled) whenever a score exceeds it by more than 8.
;  3. Output projection in groups of 8 heads x 64 columns: O goes through ws (write-through stores, drained, then a flag),
"""

class Gen:
    def __init__(self, **kw):
        self.A = Asm(); self.nst = 0; self.segs = {}
        self.stamps = None; self.kv = "nt"; self.xw = "nt"; self.wo = "nt"; self.dump = None; self.T = 8.0
        self.pf = True; self.nodma = False; self.sleep = 4; self.one = True; self.wopf = True; self.dpos = 1; self.stag = None; self.bpf = 'ok'; self.lim = 0; self.limw = 8; self.map = '4x8'; self.wosteps = (4, 4, 4, 4); self.flags = 'so'; self.warm = False; self.sleep1 = 4; self.gran = True; self.probe = 1020; self.apoll = False; self.eps = 0; self.prepoll = False; self.spinmax = 4000000; self.pollpos = 1; self.split = False; self.par = 0; self.loopw = 12; self.loopn = 6; self.nfast = 2; self.rot = '24'; self.fld = 'sc1'; self.fst = 'sc1'
        self.kvsched = {5: ["K0", "V0"], 6: ["K1"], 7: ["V1"], 8: ["K2"], 9: ["V2"]}
        if kw.get("kvs"):
            self.kvsched = {}
            for it, c in zip(("K0", "V0", "K1", "V1", "K2", "V2"), kw["kvs"]): self.kvsched.setdefault(int(c), []).append(it)
        self.__dict__.update(kw)
        self.vm = []
    def stamp(self, k):
        sets = {"ws": range(11), "dbg": range(11), "cyc": range(11), "loop": (0, 1, 2, 3, 11, 12, 13, 14, 4, 5, 7, 10), "q": (0, 1, 20, 21, 22, 23, 25, 27, 2, 3, 4, 10)}
        if not self.stamps or k not in sets[self.stamps]: return []
        i = list(sets[self.stamps]).index(k); self.nst = max(self.nst, i + 1)
        return [f"{'s_memtime' if self.stamps == 'cyc' else 's_memrealtime'} s[{STAMP0+2*i}:{STAMP0+2*i+1}]"]
    def mark(self): return len(self.A.l)
    def seg(self, name, a): self.segs[name] = self.A.l[a:]
    def emit(self, l):
        for x in l: self.A(x)
    def weave(self, mf, gaps):
        assert len(mf) == len(gaps)
        for m, g in zip(mf, gaps):
            self.A(m); self.emit(g)
    def younger(self, tag): return len(self.vm) - 1 - max(i for i, t in enumerate(self.vm) if t == tag)

    def dma(self, v, srd, so, flag, n=4):
        return [f"buffer_load_dwordx4 v{v+p}, {sr(srd)}, s{so} offen offset:{1024*p} {flag} lds" for p in range(n)]
    def dma_k(self): return ["s_nop 0"] * 4 if self.nodma else self.dma(vKD, sK, sKSO, self.kv)
    def dma_v(self): return ["s_nop 0"] * 4 if self.nodma else self.dma(vVD, sV, sVSO, self.kv)
    def m0(self, slot): return f"s_add_u32 m0, s{sW4K}, {slot*SLOT}"
    def next_chunk(self):
        return [f"s_lshl_b32 s{sSOA}, s{sCC}, 7", f"s_lshl_b32 s{sSOB}, s{sCC}, 19",
                f"s_add_u32 s{sCC}, s{sCC}, 1", f"s_and_b32 s{sCC}, s{sCC}, 7"]

    def prologue(self):
        A = self.A
        self.emit(self.stamp(0))
        A(f"""
        s_cmp_ge_u32 s2, 256
        s_cbranch_scc1 L_end
        s_load_dwordx16 s[4:19], s[0:1], 0
        v_lshrrev_b32 v1, 6, v0
        v_and_b32 v0, 63, v0
        s_and_b32 s{sT0}, s2, 7
        v_readfirstlane_b32 s{sW}, v1
        """)
        if self.pf:
            A(f"""
            s_getpc_b64 s[{sRET}:{sRET+1}]
            L_pcref:
            v_lshlrev_b32 v{vT}, 13, v1
            v_lshl_add_u32 v{vT}, v0, 7, v{vT}
            v_min_u32 v{vT}, L_hot_end - L_pcref, v{vT}
            global_load_dword v{vMX0}, v{vT}, s[{sRET}:{sRET+1}]
            """)
        A(f"""
        s_lshr_b32 s{sG}, s{sT0}, 1
        s_and_b32 s{sT0}, s{sT0}, 1
        s_lshr_b32 s{sAT}, s2, 3
        """)
        if self.map == "8x4":
            A(f"""
            s_and_b32 s{sD}, s{sAT}, 3
            s_lshr_b32 s{sJ}, s{sAT}, 2
            s_lshl_b32 s{sB}, s{sT0}, 2
            s_add_u32 s{sB}, s{sB}, s{sD}
            s_lshl_b32 s{sT1}, s{sD}, 1
            s_add_u32 s{sCC}, s{sJ}, s{sT1}
            """)
        else:
            A(f"""
            s_and_b32 s{sB}, s{sAT}, 7
            s_lshr_b32 s{sD}, s{sAT}, 3
            {f"s_lshl_b32 s{sJ}, s{sT0}, 2" if not self.par else f"s_xor_b32 s{sT0}, s{sT0}, {self.par-1}"}
            {f"s_add_u32 s{sJ}, s{sJ}, s{sD}" if not self.par else f"s_lshl1_add_u32 s{sJ}, s{sD}, s{sT0}"}
            s_mul_i32 s{sT1}, s{sD}, {self.rot[1]}
            s_mul_i32 s{sCC}, s{sB}, {self.rot[0]}
            s_add_u32 s{sCC}, s{sCC}, s{sT1}
            """)
        A(f"""
        s_lshl_b32 s{sH}, s{sG}, 3
        s_add_u32 s{sH}, s{sH}, s{sJ}
        s_and_b32 s{sCC}, s{sCC}, 7
        s_lshl_b32 s{sW4K}, s{sW}, 12
        v_lshrrev_b32 v2, 4, v0
        v_and_b32 v3, 15, v0
        v_lshrrev_b32 v6, 3, v0
        v_and_b32 v7, 7, v0
        s_lshl_b32 s{sT0}, s{sW}, 5
        v_add_u32 v5, s{sT0}, v6
        v_xor_b32 v1, v2, v7
        v_lshlrev_b32 v1, 4, v1
        v_lshl_add_u32 v{vXD}, v5, 10, v1
        v_xor_b32 v1, 64, v1
        v_lshl_add_u32 v{vXD+1}, v5, 10, v1
        s_cmp_eq_u32 s{sW}, 3
        s_cselect_b32 s{sT0}, 16384, 0
        s_sub_u32 s{sT0}, 14336, s{sT0}
        v_add_u32 v{vXD+1}, 7168, v{vXD+1}
        v_add_u32 v{vXD+2}, s{sT0}, v{vXD}
        v_add_u32 v{vXD+3}, s{sT0}, v{vXD+1}
        v_lshlrev_b32 v4, 1, v2
        v_xor_b32 v4, v4, v3
        v_lshlrev_b32 v4, 4, v4
        s_lshl_b32 s{sT0}, s{sW}, 4
        v_add_u32 v1, s{sT0}, v2
        v_lshl_add_u32 v{vWD}, v1, 13, v4
        s_mul_i32 s{sT0}, s{sB}, 114688
        s_lshl_b32 s{sT1}, s{sH}, 8
        v_xor_b32 v{vWD+2}, 128, v{vWD}
        v_add_u32 v{vWD+1}, {4*8192-1024}, v{vWD}
        v_add_u32 v{vWD+3}, {3*(4*8192-1024)}, v{vWD+2}
        v_add_u32 v{vWD+2}, {2*(4*8192-1024)}, v{vWD+2}
        s_mov_b32 s{sX+2}, 114688
        s_mov_b32 s{sX+3}, 0x20000
        s_sub_u32 s{sWQ+2}, 0x400000, s{sT1}
        s_mov_b32 s{sWQ+3}, 0x20000
        {self.m0(XSL[0])}
        s_waitcnt lgkmcnt(0)
        s_add_u32 s{sX}, s4, s{sT0}
        s_addc_u32 s{sX+1}, s5, 0
        s_add_u32 s{sWQ}, s10, s{sT1}
        s_addc_u32 s{sWQ+1}, s11, 0
        """)
        def pair(c):
            self.emit(self.next_chunk())
            self.emit(self.dma(vXD, sX, sSOA, self.xw))
            A(self.m0(WSL[c]) + "\ns_nop 0")
            self.emit(self.dma(vWD, sWQ, sSOB, self.xw))
            self.vm += [f"P{c}"] * 8
        if self.stag is not None:
            A(f"s_bitcmp{1-self.stag}_b32 s{sB}, 0\ns_cselect_b32 s{sGB}, 0, {SLOT}\ns_cbranch_scc0 L_bfirst\nL_pairs:")
        else: A(f"s_mov_b32 s{sGB}, 0")
        pair(0)
        A(self.m0(XSL[1])); pair(1)
        A(f"""
        s_add_u32 s{sOUT}, s14, s{sT0}
        s_addc_u32 s{sOUT+1}, s15, 0
        s_lshl_b32 s{sT0}, s{sB}, 5
        s_add_u32 s{sT0}, s{sT0}, s{sH}
        s_lshl_b32 s{sT0}, s{sT0}, 18
        s_add_u32 s{sK}, s6, s{sT0}
        s_addc_u32 s{sK+1}, s7, 0
        s_mov_b32 s{sK+2}, 0x40000
        s_mov_b32 s{sK+3}, 0x20000
        s_add_u32 s{sV}, s8, s{sT0}
        s_addc_u32 s{sV+1}, s9, 0
        s_mov_b32 s{sV+2}, 0x40000
        s_mov_b32 s{sV+3}, 0x20000
        s_add_u32 s{sW4B}, s{sW4K}, s{sGB}
        s_cmp_eq_u32 s{sGB}, 0
        s_cselect_b32 s{sLIM}, {self.lim}, 0
        s_mov_b32 s{sOUT+2}, 114688
        s_mov_b32 s{sOUT+3}, 0x20000
        s_lshl_b32 s{sT0}, s{sG}, 20
        {f"s_and_b32 s{sT1}, s{sJ}, 4" if self.split else f"s_mov_b32 s{sT1}, s{sJ}"}
        s_lshl_b32 s{sT1}, s{sT1}, 7
        s_add_u32 s{sT0}, s{sT0}, s{sT1}
        s_add_u32 s{sWO}, s12, s{sT0}
        s_addc_u32 s{sWO+1}, s13, 0
        s_sub_u32 s{sWO+2}, 0x400000, s{sT0}
        s_mov_b32 s{sWO+3}, 0x20000
        s_mov_b32 s{sWS}, s18
        s_mov_b32 s{sWS+1}, s19
        s_mov_b32 s{sWS+2}, {WS_SIZE}
        s_mov_b32 s{sWS+3}, 0x20000
        s_mov_b32 s{sDBG}, s16
        s_mov_b32 s{sDBG+1}, s17
        s_mov_b32 s{sDBG+2}, 256
        s_mov_b32 s{sDBG+3}, 0x20000
        s_mov_b32 s{sSC}, {f2u(SCALE):#x}
        """)
        if self.map == "8x4":
            A(f"""
            s_lshl_b32 s{sD}, s{sAT}, 2
            s_add_u32 s{sD}, s{sD}, s{sW}
            s_lshl_b32 s{sD}, s{sD}, 13
            s_sub_u32 s{sD}, s{sD}, s{sT1}
            v_lshl_add_u32 v{vMX1}, v0, 7, s{sD}
            """)
        elif self.stag is not None:
            A(f"""
            s_lshl_b32 s{sT0}, s{sD}, 2
            s_lshr_b32 s{sT1}, s{sB}, 1
            s_add_u32 s{sT0}, s{sT0}, s{sT1}
            s_lshl_b32 s{sT0}, s{sT0}, 2
            s_add_u32 s{sT0}, s{sT0}, s{sW}
            s_lshl_b32 s{sT0}, s{sT0}, 14
            s_lshl_b32 s{sD}, s{sD}, 7
            s_sub_u32 s{sD}, s{sT0}, s{sD}
            s_lshl_b32 s{sT0}, s{sGB}, 12
            s_add_u32 s{sD}, s{sD}, s{sT0}
            v_lshrrev_b32 v{vMX1}, 2, v0
            v_lshl_add_u32 v{vMX1}, v{vMX1}, 10, s{sD}
            v_and_b32 v{vT}, 3, v0
            v_lshl_add_u32 v{vMX1}, v{vT}, 7, v{vMX1}
            """)
        else:
            A(f"""
            {f"s_mov_b32 s{sD}, 0" if self.split else f"s_lshl_b32 s{sD}, s{sD}, {8 if self.par else 7}"}
            s_lshl_b32 s{sT0}, s{sAT}, 2
            s_add_u32 s{sT0}, s{sT0}, s{sW}
            s_lshl_b32 s{sT0}, s{sT0}, 13
            s_sub_u32 s{sD}, s{sT0}, s{sD}
            v_bfe_u32 v{vMX1}, v0, 2, 3
            v_lshl_add_u32 v{vMX1}, v{vMX1}, 10, s{sD}
            v_and_b32 v{vT}, 3, v0
            v_lshl_add_u32 v{vMX1}, v{vT}, {8 if self.par else 7}, v{vMX1}
            """)
        A(f"""
        s_lshl_b32 s{sT1}, s{sJ}, 2
        s_lshr_b32 s{sT1}, 0x52419876, s{sT1}
        s_and_b32 s{sT1}, s{sT1}, 15
        s_lshl_b32 s{sSL}, s{sT1}, 14
        """)
        own = self.flags[0] == "o"; own2 = self.flags[1] == "o"
        A(f"""
        s_lshl_b32 s{sT0}, s{sB}, 2
        s_add_u32 s{sT0}, s{sT0}, s{sG}
        s_lshl_b32 s{sOB}, s{sT0}, 18
        s_lshl_b32 s{sT1}, s{sW}, 13
        s_add_u32 s{sOB}, s{sOB}, s{sT1}
        s_lshl_b32 s{sT0}, s{sT0}, 2
        s_add_u32 s{sT0}, s{sT0}, s{sW}
        s_lshl_b32 s{sT0}, s{sT0}, 10
        s_add_u32 s{sT0}, s{sT0}, {F1}
        v_add_u32 v{vT}, s{sJ}, v0
        v_and_b32 v{vT}, 7, v{vT}
        s_lshl_b32 s{sT1}, s{sJ}, 7
        {f"s_add_u32 s{sT1}, s{sT0}, s{sT1}" if own else f"s_mov_b32 s{sT1}, s{sT0}"}
        v_lshl_add_u32 v{vF1P}, v{vT}, 3, s{sT1}
        s_lshl_b32 s{sT1}, s{sJ}, 3
        s_add_u32 s{sT1}, s{sT0}, s{sT1}
        {f"v_lshl_add_u32 v{vFOWN}, v{vT}, 7, s{sT1}" if own else f"v_mov_b32 v{vFOWN}, s{sT1}"}
        s_lshl_b32 s{sT0}, s{sB}, 3
        s_add_u32 s{sT0}, s{sT0}, s{sJ}
        s_lshl_b32 s{sT0}, s{sT0}, 2
        s_add_u32 s{sT0}, s{sT0}, s{sW}
        s_lshl_b32 s{sPBs}, s{sT0}, 15
        s_add_u32 s{sPBs}, s{sPBs}, {PB}
        s_lshl_b32 s{sT0}, s{sT0}, 9
        s_add_u32 s{sT0}, s{sT0}, {F2}
        v_and_b32 v{vT}, 3, v0
        v_max_u32 v{vT}, 1, v{vT}
        v_xor_b32 v{vT}, s{sG}, v{vT}
        s_lshl_b32 s{sT1}, s{sG}, 7
        {f"s_add_u32 s{sT1}, s{sT0}, s{sT1}" if own2 else f"s_mov_b32 s{sT1}, s{sT0}"}
        v_lshl_add_u32 v{vF2P}, v{vT}, 3, s{sT1}
        s_lshl_b32 s{sT1}, s{sG}, 3
        s_add_u32 s{sT1}, s{sT0}, s{sT1}
        {f"v_lshl_add_u32 v{vF2S}, v{vT}, 7, s{sT1}" if own2 else f"v_mov_b32 v{vF2S}, s{sT1}"}
        v_mov_b32 v{vCNT}, {EPOCH}
        s_or_b32 s{sAT}, s2, s{sW}
        s_cbranch_scc1 L_noepoch
        buffer_load_dwordx2 {vr(vTAG,2)}, v{vCNT}, {sr(sWS)}, 0 offen sc1
        L_noepoch:
        """)
        A(f"""
        v_lshrrev_b32 v6, 1, v3
        v_xor_b32 v6, v6, v2
        v_lshlrev_b32 v6, 4, v6
        v_lshl_add_u32 v6, v3, 7, v6
        s_add_u32 s{sT0}, s{sW4K}, {XSL[0]*SLOT}
        v_add_u32 v{vXR}, s{sT0}, v6
        v_xor_b32 v{vXR+1}, 64, v{vXR}
        v_add_u32 v{vXR+2}, {(XSL[2]-XSL[0])*SLOT}, v{vXR}
        v_add_u32 v{vXR+3}, {(XSL[2]-XSL[0])*SLOT}, v{vXR+1}
        v_bfe_u32 v{vT}, v0, 2, 2
        v_and_b32 v{vT+1}, 3, v0
        v_and_b32 v6, 1, v2
        v_lshl_add_u32 v6, v6, 2, v{vT}
        v_lshlrev_b32 v6, 5, v6
        v_lshl_add_u32 v6, v{vT+1}, 3, v6
        v_lshl_add_u32 v6, v{vT}, 8, v6
        v_lshl_add_u32 v{vVR}, v2, 10, v6
        v_lshl_add_u32 v6, v2, 11, v6
        v_add_u32 v{vWR}, {WSL[0]*SLOT}, v6
        """)
        for db in range(1, 8): A(f"v_xor_b32 v{vWR+db}, {db*32}, v{vWR}")
        for db in range(8): A(f"v_add_u32 v{vWR+8+db}, {(WSL[2]-WSL[0])*SLOT}, v{vWR+db}")
        late = [f"v_lshl_add_u32 v{vVD}, v1, 8, v4", f"v_xor_b32 v{vVD+1}, 128, v{vVD}", f"v_mov_b32 v{vVD+2}, v{vVD}", f"v_mov_b32 v{vVD+3}, v{vVD+1}"]
        for p in range(4):
            late += [f"v_add_u32 v4, {4*p}, v2", "v_xor_b32 v4, v4, v3", "v_lshlrev_b32 v4, 4, v4", f"v_lshl_add_u32 v{vKD+p}, v1, 8, v4"]
        self.emit(late); late = []
        A(self.m0(XSL[2])); pair(2)
        self.emit(self.stamp(1))
        late += [f"v_add_u32 v{vVR}, {3*SLOT}, v{vVR}"] + [f"v_xor_b32 v{vVR+db}, {db*32}, v{vVR}" for db in range(1, 8)]
        late += ["v_xor_b32 v6, v2, v3", "v_lshlrev_b32 v6, 4, v6", f"v_lshl_add_u32 v{vKR}, v3, 8, v6"]
        late += [f"v_xor_b32 v{vKR+s}, {s*64}, v{vKR}" for s in range(1, 4)]
        if self.split:
            A(f"s_bfe_u32 s{sT0}, s{sJ}, 0x10001\ns_and_b32 s{sT1}, s{sJ}, 1\ns_lshl_b32 s{sT1}, s{sT1}, 6\ns_lshl_b32 s{sN0}, s{sT0}, 7\ns_add_u32 s{sN0}, s{sN0}, s{sT1}"
              f"\ns_lshl_b32 s{sT0}, s{sT0}, 8\ns_sub_u32 s{sN0+1}, 320, s{sT0}")
            late += ["v_lshlrev_b32 v6, 1, v2", "v_xor_b32 v6, v6, v7", "v_lshrrev_b32 v4, 2, v6", f"v_mul_u32_u24 v4, s{sN0+1}, v4",
                     "v_lshl_add_u32 v6, v6, 4, v4", f"v_add_u32 v6, s{sN0}, v6", f"v_lshl_add_u32 v{vOD}, v5, 10, v6"]
        else:
            late += ["v_lshlrev_b32 v6, 1, v2", "v_xor_b32 v6, v6, v7", "v_lshlrev_b32 v6, 4, v6", f"v_lshl_add_u32 v{vOD}, v5, 10, v6"]
        late += [f"v_add_u32 v{vOD+p}, {p*7168}, v{vOD}" for p in range(1, 4)]
        late += ["v_and_b32 v6, 1, v2", "v_lshlrev_b32 v6, 1, v6", f"v_lshrrev_b32 v4, 1, v{vT}", "v_or_b32 v6, v6, v4", f"v_xor_b32 v6, s{sG}, v6",
                 "v_lshlrev_b32 v6, 5, v6", f"v_lshl_add_u32 v6, v{vT+1}, 3, v6", f"v_lshl_add_u32 v6, v{vT}, 7, v6", f"v_lshl_add_u32 v{vORB}, v2, 9, v6"]
        late += [f"v_xor_b32 v{vORB+n}, {n*32}, v{vORB}" for n in range(1, 4)]
        if self.split:
            A(f"s_lshr_b32 s{sT0}, s{sG}, 1\ns_mul_i32 s{sT0}, s{sT0}, s{sN0+1}\ns_add_u32 s{sT0}, s{sT0}, s{sN0}\ns_and_b32 s{sT1}, s{sJ}, 4\ns_lshl_b32 s{sT1}, s{sT1}, 7\ns_add_u32 s{sN0+2}, s{sT0}, s{sT1}")
        else: A(f"s_lshl_b32 s{sN0+2}, s{sJ}, 7")
        late += ["v_and_b32 v6, 1, v2", "v_lshl_add_u32 v6, v6, 4, v3", "v_lshlrev_b32 v6, 10, v6", f"v_lshl_add_u32 v6, s{sW}, 15, v6",
                 f"v_add_u32 v6, s{sN0+2}, v6", f"v_lshl_add_u32 v6, s{sG}, 5, v6", "v_lshrrev_b32 v4, 1, v2", f"v_lshl_add_u32 v{vOUTA}, v4, 4, v6",
                 f"v_lshlrev_b32 v{vL16}, 4, v0"]
        late += [f"v_mov_b32 v{vONE+i}, 0x3f803f80" for i in range(4)]
        self.late = late
        if self.one: A(f"s_cmp_eq_u32 s{sW}, 3\ns_cbranch_scc1 L_one")

    def q_reads(self, c, st):
        s, dh = st // 2, st % 2
        hi = (c % 4) // 2
        xo = (XSL[c % 4] - XSL[2 * hi]) * SLOT; wo = (WSL[c % 4] - WSL[2 * hi]) * SLOT
        r = [f"ds_read_b128 {ar(64+8*s+8*(c==7 and s==1)+4*q)}, v{vXR+2*hi+s} offset:{xo+2048*q}" for q in range(self.NQ)] if dh == 0 else []
        for d in range(4):
            for a in range(2):
                r.append(f"ds_read_b64_tr_b16 {ar(16*st+4*d+2*a,2)}, v{vWR+8*hi+4*dh+d} offset:{wo+s*8192+a*1024}")
        return r
    def q_mfs(self, st, first=False, last=False):
        s, dh = st // 2, st % 2
        s += last and s
        return [f"{MF} {vr(qacc(4*dh+d,q))}, {ar(16*st+4*d)}, {ar(64+8*s+4*q)}, {'0' if first else vr(qacc(4*dh+d,q))}"
                for d in range(4) for q in range(self.NQ)]
    @staticmethod
    def spread(items, n, start=0):
        g = [[] for _ in range(n)]
        k = n - start
        for i, x in enumerate(items): g[start + i * k // max(len(items), 1)].append(x)
        return g
    def qphase(self):
        A = self.A; NQ = self.NQ; G = 4 * NQ
        late = list(self.late) + [f"v_mov_b32 v{vO+8*db+4*q+i}, 0" for q in range(NQ) for db in range(8) for i in range(4)]
        for c in range(8):
            d = []
            if c <= 4:
                nc = self.next_chunk()
                d = [([self.m0(XSL[(c + 3) % 4])] + nc[:2], self.dma(vXD, sX, sSOA, self.xw, 2 * NQ), f"P{c+3}"),
                     ([self.m0(WSL[(c + 3) % 4])] + nc[2:], self.dma(vWD, sWQ, sSOB, self.xw), f"P{c+3}")]
            for it in self.kvsched.get(c, []): d.append(self.kv_item(it))
            bar = [f"s_waitcnt vmcnt({self.younger(f'P{c}')})", "s_barrier"] + self.stamp(20 + c)
            seq = []
            if self.wopf and c in self.wosteps:
                ws = [w for w in range(4) if self.wosteps[w] == c and (w < 3) == (NQ == 2)]
                ld = f"buffer_load_dword v{vMX1}, v{vMX1}, {sr(sWO)}, 0 offen"
                if len(ws) == (3 if NQ == 2 else 1): seq.append([ld])
                elif ws: seq.append([f"s_bitcmp1_b32 {sum(1 << w for w in ws)}, s{sW}\ns_cbranch_scc0 L_nopf{c}\n{ld}\nL_nopf{c}:"])
            for su, ld, tag in d:
                seq += [su] + [[x] for x in ld]; self.vm += [tag] * len(ld)
            if c == 0:
                self.emit(bar + self.q_reads(0, 0) + self.q_reads(0, 1))
                order = ((0, 2), (1, 3))
            else:
                A("s_waitcnt lgkmcnt(0)")
                order = ((2, 0), (3, 1), (0, 2), (1, 3)) if c < 7 else ((2, 0), (3, 2), (0, 1), (2, 3))
            ng = G * len(order)
            dg = self.spread(seq, ng, 1)
            for k, (sm, srd) in enumerate(order):
                rd = self.q_reads(c, srd)
                first = 1 if (k == 0 and c > 0 and NQ == 2) else 0
                nr = 5 if NQ == 2 else G
                rg = [[]] * first + self.spread(rd, nr) + [[]] * (G - nr - first)
                if k == 0 and c > 0: rg[0] = bar + rg[0]
                gaps = []
                for g in range(G):
                    x = rg[g] + sum(dg[k * G + g], [])
                    if c >= 1 and (len(x) < 2 or NQ == 1):
                        n = 2 - (len(x) > 0) + (NQ == 1 and c <= 3); x = x + late[:n]; late = late[n:]
                    gaps.append(x)
                self.weave(self.q_mfs(sm, c == 0, c == 7 and k >= 2), gaps)
            if c == 4: assert len(late) <= 32 * NQ, len(late)
        assert not late
    def kv_item(self, it):
        t = int(it[1:])
        if it[0] == "K": return ([f"s_add_u32 m0, s{sW4B}, {t*SLOT}", f"s_add_u32 s{sKSO}, s{sGB}, {t*SLOT}"], self.dma_k(), it)
        return ([f"s_add_u32 m0, s{sW4B}, {(3+t)*SLOT}", f"s_add_u32 s{sVSO}, s{sGB}, {t*SLOT}"], self.dma_v(), it)
    def bfirst(self):
        A = self.A
        m = self.mark()
        A(f"""
        L_bfirst:
        s_lshl_b32 s{sKSO}, s{sD}, 2
        s_add_u32 s{sKSO}, s{sKSO}, s{sW}
        s_mul_i32 s{sKSO}, s{sKSO}, 7168
        v_min_u32 v{vT}, 55, v0
        v_lshlrev_b32 v{vT}, 7, v{vT}
        buffer_load_dword v{vPOLL}, v{vT}, {sr(sX)}, s{sKSO} offen
        s_lshl_b32 s{sVSO}, s{sB}, 5
        s_add_u32 s{sVSO}, s{sVSO}, s{sH}
        s_lshl_b32 s{sVSO}, s{sVSO}, 18
        s_add_u32 s{sK}, s6, s{sVSO}
        s_addc_u32 s{sK+1}, s7, 0
        s_mov_b32 s{sK+2}, 0x40000
        s_mov_b32 s{sK+3}, 0x20000
        s_add_u32 s{sV}, s8, s{sVSO}
        s_addc_u32 s{sV+1}, s9, 0
        s_mov_b32 s{sV+2}, 0x40000
        s_mov_b32 s{sV+3}, 0x20000
        s_mov_b32 s{sKSO}, 0
        s_mov_b32 s{sVSO}, 0
        {self.m0(0)}
        """)
        for p, x in enumerate(self.dma_k()):
            A(f"v_add_u32 v{vT}, {4*p}, v2\nv_xor_b32 v{vT}, v{vT}, v3\nv_lshlrev_b32 v{vT}, 4, v{vT}\nv_lshl_add_u32 v{vKD+p}, v1, 8, v{vT}\n{x}")
        A(f"{self.m0(3)}\nv_lshl_add_u32 v{vVD}, v1, 8, v4\nv_xor_b32 v{vVD+1}, 128, v{vVD}\nv_mov_b32 v{vVD+2}, v{vVD}\nv_mov_b32 v{vVD+3}, v{vVD+1}")
        self.emit(self.dma_v())
        nk = sum(c == "k" for c in self.bpf)
        if nk: A(f"v_and_b32 v{vT}, 31, v0\nv_lshlrev_b32 v{vT}, 7, v{vT}")
        for t in range(1, nk + 1):
            A(f"""
            s_add_u32 s{sKSO}, s{sW4K}, {t*SLOT}
            buffer_load_dword v{vPOLL}, v{vT}, {sr(sK)}, s{sKSO} offen
            buffer_load_dword v{vPOLL+1}, v{vT}, {sr(sV)}, s{sKSO} offen
            """)
        if "o" in self.bpf:
            A(f"""
            s_lshl_b32 s{sKSO}, s{sG}, 20
            s_add_u32 s{sWO}, s12, s{sKSO}
            s_addc_u32 s{sWO+1}, s13, 0
            s_mov_b32 s{sWO+2}, 0x100000
            s_mov_b32 s{sWO+3}, 0x20000
            s_lshl_b32 s{sKSO}, s{sD}, 2
            s_lshr_b32 s{sVSO}, s{sB}, 1
            s_add_u32 s{sKSO}, s{sKSO}, s{sVSO}
            s_lshl_b32 s{sKSO}, s{sKSO}, 2
            s_add_u32 s{sKSO}, s{sKSO}, s{sW}
            s_lshl_b32 s{sKSO}, s{sKSO}, 14
            s_lshr_b32 s{sVSO}, s{sJ}, 2
            s_lshl_b32 s{sVSO}, s{sVSO}, 9
            s_add_u32 s{sKSO}, s{sKSO}, s{sVSO}
            v_lshrrev_b32 v{vT}, 2, v0
            v_and_b32 v{vT+1}, 3, v0
            v_lshlrev_b32 v{vT+1}, 7, v{vT+1}
            v_lshl_add_u32 v{vT}, v{vT}, 10, v{vT+1}
            buffer_load_dword v{vPOLL}, v{vT}, {sr(sWO)}, s{sKSO} offen
            """)
        A(f"{self.m0(XSL[0])}\ns_branch L_pairs")
        self.seg("bf", m)

    def kreads(self, slot, half):
        return [f"ds_read_b128 {ar(aK+16*u+4*s)}, v{vKR+s} offset:{slot*SLOT+8192*half+4096*u}" for s in range(4) for u in range(2)]
    def vreads(self, slot, half):
        return [f"ds_read_b64_tr_b16 {ar(aV+4*db+2*a,2)}, v{vVR+db} offset:{slot*SLOT+8192*half+4096*a}" for db in range(8) for a in range(2)]
    def qks(self, S, zero=False):
        return [f"{MF} {vr(S+8*u+4*q)}, {ar(aK+16*u+4*s)}, {vr(vQ+16*q+4*s)}, " + (vr(S + 8 * u + 4 * q) if s else "0" if zero else vr(vCI + 4 * q))
                for s in range(4) for u in range(2) for q in range(self.NQ)]
    def pvs(self):
        r = []
        for q in range(self.NQ):
            r.append(f"{MF} {vr(vL+4*q)}, {vr(vONE)}, {vr(vP+4*q)}, {vr(vL+4*q)}")
            r += [f"{MF} {vr(vO+8*db+4*q)}, {ar(aV+4*db)}, {vr(vP+4*q)}, {vr(vO+8*db+4*q)}" for db in range(8)]
        return r
    def sregs(self, S, q): return [S + 8 * u + 4 * q + i for u in range(2) for i in range(4)]
    def max8(self, S, q, d):
        r = self.sregs(S, q)
        return [f"v_max3_f32 v{d}, v{r[0]}, v{r[1]}, v{r[2]}", f"v_max3_f32 v{d}, v{d}, v{r[3]}, v{r[4]}",
                f"v_max3_f32 v{d}, v{d}, v{r[5]}, v{r[6]}", f"v_max_f32 v{d}, v{d}, v{r[7]}"]
    def check(self, S):
        a = self.max8(S, 0, vMX0)
        if self.NQ == 2:
            b = self.max8(S, 1, vMX1)
            a = [a[0], b[0], a[1], b[1], a[2], b[2], b[3], f"v_max3_f32 v{vMX0}, v{vMX0}, v{self.sregs(S,0)[7]}, v{vMX1}"]
        return a + [f"v_cmp_lt_f32 vcc, {f2u(self.T):#x}, v{vMX0}"]
    def softmax(self, S, q):
        r = self.sregs(S, q)
        e = [f"v_exp_f32 v{x}, v{x}" for x in r]
        c = [f"v_cvt_pk_bf16_f32 v{vP+4*q+k}, v{r[2*k]}, v{r[2*k+1]}" for k in range(4)]
        return e, c
    def sec_P(self, Sdone, Schk, k, v, dma, tag, bar=True):
        A = self.A; NQ = self.NQ
        A("s_waitcnt lgkmcnt(0)")
        b = [f"s_waitcnt vmcnt({self.loopw if tag < self.loopn else 12})", "s_barrier"] if bar else []
        if bar and self.lim:
            b = [f"s_cmp_ge_u32 s{sT}, s{sLIM}\ns_cbranch_scc1 L_lim{tag}_{NQ}\ns_waitcnt vmcnt({self.limw})\nL_lim{tag}_{NQ}:"] + b
        k = [[x] for x in k] if k else [[]] * 8
        d = [[x] for x in dma] if dma else [[]] * 5
        x = self.check(Schk)
        if NQ == 2:
            f, c = self.softmax(Sdone, 1)
            g = [b + k[0] + c[1:2], d[0] + f[4:5], k[1] + k[2], f[5:6], k[3] + c[2:3], f[6:7], f[7:8], k[4] + c[3:4],
                 k[5] + x[0:1], k[6] + x[1:2], k[7] + x[2:3], v[0:1] + x[3:4], v[1:2] + d[1] + x[4:5], v[2:3] + x[5:6],
                 v[3:4] + x[6:7], v[4:5] + x[7:8], v[5:6] + x[8:9], v[6:8]]
        else:
            g = [b + k[0], k[1] + d[0] + v[0:2], k[2] + v[2:4], k[3] + d[1] + v[4:6], k[4] + v[6:8] + x[0:1], k[5] + x[1:2],
                 k[6] + x[2:3], k[7] + x[3:4], x[4:5]]
        self.weave(self.pvs(), g)
        A(f"s_cbranch_vccnz L_rs_{tag}_{NQ}\nL_rsb_{tag}_{NQ}:")

    def sec_Q(self, Snew, S, v, dma, tail=(), first=False):
        NQ = self.NQ
        e, c = self.softmax(S, 0)
        d = [[x] for x in dma] if dma else [[]] * 3
        t = list(tail) + [[]] * 2
        v = v[-8:]
        if NQ == 2:
            f, cc = self.softmax(S, 1)
            g = [e[0:1], e[1:2], v[0:2], e[2:3], e[3:4], v[2:4] + c[0:1], e[4:5], e[5:6], v[4:6] + c[1:2], e[6:7], e[7:8],
                 v[6:8] + c[2:3], f[0:1] + c[3:4], d[0] + f[1:2], d[1] + t[0] + f[2:3], d[2] + t[1] + f[3:4] + cc[0:1]]
            if self.dpos == 1:
                g[0] = d[0] + g[0]; g[6] = d[1] + g[6]; g[13] = d[2] + f[1:2]; g[14] = f[2:3]
                g[15] = t[0] + t[1] + f[3:4] + cc[0:1]
        else:
            g = [v[0:2] + e[0:2], v[2:4] + e[2:3] + c[0:1], v[4:6] + e[3:5], v[6:8] + c[1:2] + e[5:6], d[0] + e[6:7] + c[2:3],
                 d[1] + e[7:8], d[2] + t[0] + c[3:4], t[1] + ["s_nop 0"]]
        self.weave(self.qks(Snew), g)

    def allmax(self, regs):
        r = []
        for op in ("v_permlane32_swap_b32", "v_permlane16_swap_b32"):
            r += [f"v_mov_b32 v{vT+i}, v{x}" for i, x in enumerate(regs)] + ["s_nop 1"]
            r += [f"{op} v{x}, v{vT+i}" for i, x in enumerate(regs)]
            r += [f"v_max_f32 v{x}, v{x}, v{vT+i}" for i, x in enumerate(regs)]
        return r
    def rescale(self):
        A = self.A; NQ = self.NQ
        for tag in range(13): A(f"L_rs_{tag}_{NQ}:\ns_mov_b32 s{sT0}, {tag}\ns_branch L_rs{'BA'[tag%2]}_{NQ}")
        for S, n, tags in ((vSA, "A", list(range(1, 13, 2))), (vSB, "B", list(range(0, 13, 2)))):
            m = self.mark()
            A(f"L_rs{n}_{NQ}:")
            mx = [vMX0, vMX1][:NQ]
            for q in range(NQ): self.emit(self.max8(S, q, mx[q]))
            self.emit(self.allmax(mx))
            for q in range(NQ): A(f"v_max_f32 v{mx[q]}, 0, v{mx[q]}\nv_sub_f32 v{vT+q}, 0, v{mx[q]}\nv_exp_f32 v{vT+q}, v{vT+q}")
            for q in range(NQ):
                for x in self.sregs(S, q) + [vCI + 4 * q + i for i in range(4)]: A(f"v_sub_f32 v{x}, v{x}, v{mx[q]}")
            for q in range(NQ):
                for x in [vL + 4 * q + i for i in range(4)] + [vO + 8 * db + 4 * q + i for db in range(8) for i in range(4)]:
                    A(f"v_mul_f32 v{x}, v{x}, v{vT+q}")
            self.seg(f"rs{n}{NQ}", m)
            for t in tags[:-1]: A(f"s_cmp_eq_u32 s{sT0}, {t}\ns_cbranch_scc1 L_rsb_{t}_{NQ}")
            A(f"s_nop 0\ns_branch L_rsb_{tags[-1]}_{NQ}")

    def attn_prologue(self):
        A = self.A; NQ = self.NQ; per = 2 * NQ
        src = lambda s, q: [qacc(2 * s + h, q) + i for h in range(2) for i in range(4)]
        mul = lambda s: [f"v_mul_f32 v{x}, s{sSC}, v{x}" for q in range(NQ) for x in src(s, q)]
        def pack(s0):
            r = [f"v_cvt_pk_bf16_f32 v{vQ+16*q+4*s+k}, v{src(s,q)[2*k]}, v{src(s,q)[2*k+1]}" for s in (s0, s0 + 1) for q in range(NQ) for k in range(4)]
            for op in ("v_permlane32_swap_b32", "v_permlane16_swap_b32"):
                r += ["s_nop 0"] + [f"{op} v{vQ+16*q+4*s+k}, v{vQ+16*q+4*s+2+k}" for s in (s0, s0 + 1) for q in range(NQ) for k in range(2)]
            return r
        n = 8 * NQ; k0 = self.kreads(0, 0)
        g = self.spread(mul(0) + mul(1), n, 2 if NQ == 2 else 3)
        g[0] = [f"s_waitcnt vmcnt({self.younger('K0')})", "s_barrier"] + self.stamp(2)
        for i, x in enumerate(k0): g[1 + i * (n - 1) // 8].insert(0, x)
        self.weave(self.q_mfs(1, last=True) + self.q_mfs(3, last=True), g)
        su, ld = [], []
        for it in self.kvsched.get(8, []):
            su, ld, tag = self.kv_item(it); self.vm += [tag] * 4
        if self.stag is not None:
            self.emit([f"s_cmp_lg_u32 s{sGB}, 0", f"s_cbranch_scc1 L_nok_{NQ}"] + su + ld + [f"L_nok_{NQ}:"]); su, ld = [], []
        p = self.spread(pack(0), 5)
        self.emit(su + sum([a + b for a, b in zip(p, [[x] for x in ld] + [[]] * 5)], []) + ["s_nop 0"])
        qk = self.qks(vSA, True); k1 = self.kreads(0, 1)
        for half, fill in ((0, mul(2) + mul(3) + pack(2) + ["s_nop 0"]), (1, [f"v_mov_b32 v{vL+i}, 0" for i in range(4 * NQ)])):
            if half and self.dump == "q": self.dump_regs(vQ)
            g = self.spread(fill, 2 * per)
            for i in range(4): g[i * NQ + NQ - 1].insert(0, k1[4 * half + i])
            self.weave(qk[2 * per * half:2 * per * (half + 1)], g)
        A(f"s_waitcnt vmcnt({self.younger('V0')})\ns_barrier")
        su, ld = [], []
        for it in self.kvsched.get(9, []):
            su, ld, tag = self.kv_item(it); self.vm += [tag] * 4
        if self.stag is not None: self.emit(self.vreads(0, 0)[:8] + [f"s_cmp_lg_u32 s{sGB}, 0", f"s_cbranch_scc1 L_nov_{NQ}"] + su + ld + [f"L_nov_{NQ}:"])
        else: self.emit(su + self.vreads(0, 0)[:8] + ld)
        mx = [vMX0, vMX1][:NQ]
        for q in range(NQ): self.emit(self.max8(vSA, q, mx[q]))
        self.emit(self.allmax(mx))
        for q in range(NQ):
            for i in range(4): A(f"v_sub_f32 v{vCI+4*q+i}, 0, v{mx[q]}")
        for q in range(NQ):
            for x in self.sregs(vSA, q): A(f"v_sub_f32 v{x}, v{x}, v{mx[q]}")
        self.sec_Q(vSB, vSA, self.vreads(0, 0), None)
        A(f"s_mov_b32 s{sT}, 0\ns_mov_b32 s{sKSO}, {3*SLOT}\ns_mov_b32 s{sVSO}, {3*SLOT}")
        assert self.younger("K1") == 12
        self.emit(self.stamp(3))

    def tile(self, r, tag, da, db, ta=(), tb=()):
        s0, s1 = r, (r + 1) % 3
        self.sec_P(vSA, vSB, self.kreads(s1, 0), self.vreads(s0, 1), [self.m0(s0)] + da[:1], tag)
        self.sec_Q(vSA, vSB, self.vreads(s0, 1), da[1:], [[], list(ta)])
        self.sec_P(vSB, vSA, self.kreads(s1, 1), self.vreads(s1, 0), [self.m0(3 + s0)] + db[:1], tag + 1)
        self.sec_Q(vSB, vSA, self.vreads(s1, 0), db[1:], [[], list(tb)])
    def attn_loop(self):
        A = self.A; NQ = self.NQ
        A(f"L_a_{NQ}:")
        for r in range(3):
            self.tile(r, 2 * r, self.dma_k(), self.dma_v(), [f"s_add_u32 s{sKSO}, s{sKSO}, {SLOT}"],
                      [f"s_add_u32 s{sVSO}, s{sVSO}, {SLOT}"] + ([f"s_add_u32 s{sT}, s{sT}, 1", f"s_cmp_lt_u32 s{sT}, 4"] if r == 2 and self.stamps != "loop" else []))
            if r == 0: A(f"s_call_b64 s[{sRET}:{sRET+1}], L_x")
        if self.stamps == "loop":
            A(f"s_add_u32 s{sT}, s{sT}, 1")
            for k in range(1, 5):
                A(f"s_cmp_eq_u32 s{sT}, {k}\ns_cbranch_scc0 L_ls{k}_{NQ}"); self.emit(self.stamp(10 + k)); A(f"L_ls{k}_{NQ}:")
            A(f"s_cmp_lt_u32 s{sT}, 4")
        A(f"s_cbranch_scc1 L_a_{NQ}\nL_last_{NQ}:")
        so = lambda c: [f"s_mov_b32 s{sKSO}, {c << 17}"]
        wo = lambda: self.dma(vOD, sWO, sKSO, self.wo)
        self.tile(0, 6, self.dma_k(), self.dma_v(), ["v_mov_b32 v2, 0"], [f"buffer_load_dwordx2 {vr(vTAG,2)}, v2, {sr(sDBG)}, 0 offen sc1"] + so(4))
        self.tile(1, 8, wo(), wo(), so(5), so(6))
        self.tile(2, 10, wo(), wo(), so(7), [f"v_and_b32 v1, v{vTAG}, v{vTAG+1}", "v_and_b32 v1, 1, v1"])
        A(f"v_cmp_eq_u32 vcc, 0, v1\ns_cbranch_vccnz L_notag_{NQ}\nL_tag_{NQ}:")

    def loop_extras(self):
        A = self.A
        m = self.mark()
        A(f"""
        L_x:
        s_lshl_b32 s{sT1}, s{sT}, 17
        s_lshl_b32 s{sT0}, s{sT}, 14
        s_add_u32 s{sT0}, s{sT0}, {6*SLOT}
        s_add_u32 m0, s{sT0}, s{sW4K}
        s_or_b32 s{sT0}, s{sT}, s{sAT}
        """)
        self.emit(self.dma(vOD, sWO, sT1, self.wo))
        A(f"""
        s_cbranch_scc0 L_x_tag
        s_cmp_eq_u32 s{sT}, 3
        s_cbranch_scc1 L_x_pf
        s_setpc_b64 s[{sRET}:{sRET+1}]
        L_x_tag:
        s_mov_b32 s{sT0}, 0x9e3779b9
        v_add_co_u32 v{vTAG}, vcc, 0x7f4a7c15, v{vTAG}
        v_mov_b32 v1, s{sT0}
        v_mov_b32 v2, 0
        v_addc_co_u32 v{vTAG+1}, vcc, v1, v{vTAG+1}, vcc
        v_or_b32 v{vTAG}, 1, v{vTAG}
        v_or_b32 v{vTAG+1}, 1, v{vTAG+1}
        s_mov_b64 exec, 1
        buffer_store_dwordx2 {vr(vTAG,2)}, v2, {sr(sDBG)}, 0 offen sc1
        buffer_store_dwordx2 {vr(vTAG,2)}, v{vCNT}, {sr(sWS)}, 0 offen sc1
        s_mov_b64 exec, -1
        s_setpc_b64 s[{sRET}:{sRET+1}]
        L_x_pf:
        """)
        if self.pf:
            A(f"""
            s_getpc_b64 s[{sT0}:{sT1}]
            L_pcref2:
            v_lshlrev_b32 v1, 3, v{vL16}
            v_lshl_add_u32 v1, s{sW}, 13, v1
            v_min_u32 v1, L_tail_end - L_pcref2 - 4, v1
            global_load_dword v{vPOLL}, v1, s[{sT0}:{sT1}]
            """)
        A(f"s_setpc_b64 s[{sRET}:{sRET+1}]")
        self.seg("x", m)
    def notag(self):
        self.A(f"L_notag_{self.NQ}:\nv_mov_b32 v2, 0")
        self.spin(f"L_cnt_{self.NQ}", 2, sDBG, f"v_and_b32 v1, v{vTAG}, v{vTAG+1}\nv_and_b32 v1, 1, v1\nv_cmp_eq_u32 vcc, 0, v1", vTAG)
        self.A(f"s_branch L_tag_{self.NQ}")

    def dump_regs(self, base):
        A = self.A
        A(f"s_lshl_b32 s{sT0}, s{sJ}, 15\ns_add_u32 s{sT0}, s{sT0}, s{sOB}\ns_add_u32 s{sT1}, s{sT0}, 4096\ns_nop 1")
        for i in range(4 * self.NQ):
            A(f"buffer_store_dwordx4 {vr(base+4*i)}, v{vL16}, {sr(sWS)}, s{sT0 if i < 4 else sT1} offen offset:{1024*(i%4)}")
        A("s_waitcnt vmcnt(0)\ns_endpgm")

    def spin(self, label, vaddr, srd, cmp, dst=vPOLL):
        self.A(f"""
        s_mov_b32 s{sSPIN}, 0
        {label}:
        buffer_load_dwordx2 {vr(dst,2)}, v{vaddr}, {sr(srd)}, 0 offen {self.fld}
        s_add_u32 s{sSPIN}, s{sSPIN}, 1
        s_cmp_gt_u32 s{sSPIN}, {self.spinmax}
        s_cbranch_scc1 {label}_out
        s_waitcnt vmcnt(0)
        {cmp}
        s_cbranch_vccz {label}_out
        {f"s_sleep {self.sleep}" if self.sleep else ""}
        s_branch {label}
        {label}_out:
        """)

    def select(self, p, block):
        r = [f"s_and_b32 s{sT0}, s{sRDY}, s{sPEND}"]
        if block:
            r[0] += f"\ns_cbranch_scc0 L_sel{p}_{self.NQ}\nL_sel{p}_{self.NQ}_go:"
            self.polls.append(f"{p}_{self.NQ}")
        r += [f"s_ff1_i32_b32 s{sT0}, s{sT0}", f"s_bitset0_b32 s{sPEND}, s{sT0}",
              f"s_add_u32 s{sT0}, s{sT0}, s{sJ}", f"s_and_b32 s{sT0}, s{sT0}, 7", f"s_lshl_b32 s{sT1}, s{sT0}, 15",
              f"s_add_u32 s{sO0}, s{sT1}, s{sOB}", f"s_add_u32 s{sO0+1}, s{sO0}, 4096",
              f"s_lshl_b32 s{sT1}, s{sT0}, 2", f"s_lshr_b32 s{sT1}, 0x52419876, s{sT1}",
              f"s_and_b32 s{sT1}, s{sT1}, 15", f"s_lshl_b32 s{sSL+p%3}, s{sT1}, 14"]
        return r
    def poll_blocks(self):
        for p in self.polls:
            self.A(f"""
            L_sel{p}:
            s_mov_b32 s{sSPIN}, 0
            L_sel{p}_l:
            buffer_load_dwordx2 {vr(vPOLL,2)}, v{vF1P}, {sr(sWS)}, 0 offen {self.fld}
            s_add_u32 s{sSPIN}, s{sSPIN}, 1
            s_waitcnt vmcnt(0)
            v_cmp_eq_u64 vcc, {vr(vTAG,2)}, {vr(vPOLL,2)}
            s_cmp_gt_u32 s{sSPIN}, {self.spinmax}
            s_cselect_b32 s{sRDY}, -1, vcc_lo
            s_and_b32 s{sT0}, s{sRDY}, s{sPEND}
            s_cbranch_scc1 L_sel{p}_go
            {f"s_sleep {self.sleep1}" if self.sleep1 else ""}
            s_branch L_sel{p}_l
            """)

    def woreads(self, n):
        s, hb, st = (n % 8) // 2, (n % 2) ^ (n >= 62), n % 4
        return [f"ds_read_b64_tr_b16 {ar(224+8*st+4*k+2*a,2)}, v{vOR+2*hb+k} offset:{s*4096+a*2048}" for k in range(2) for a in range(2)]
    def oload(self, i, k):
        s, q = k // self.NQ, k % self.NQ
        return f"buffer_load_dwordx4 {ar(32*(i-1)+16*q+4*s)}, v{vL16}, {sr(sWS)}, s{sO0+q} offen offset:{1024*s} sc1"
    def ostep(self, n, vm=None, extra=(), reads=True, adv=True):
        NQ = self.NQ; i, s, hb = n // 8, (n % 8) // 2, (n % 2) ^ (n >= 62)
        lg = 4 if n < 63 and (reads or n % 8 == 6) else 0
        self.A("s_waitcnt " + (f"vmcnt({vm}) " if vm is not None else "") + f"lgkmcnt({lg})")
        rd = self.woreads(n + 2) if n + 2 < 64 and reads else []
        mf = []
        for k in ((0, 1) if n < 63 else (1, 0)):
            for q in range(NQ):
                y = vr(vY + 8 * (2 * hb + k) + 4 * q)
                B = vr(vQ + 16 * q + 4 * s) if i == 0 else ar(32 * (i - 1) + 16 * q + 4 * s)
                mf.append(f"{MF} {y}, {ar(224+8*(n%4)+4*k)}, {B}, {'0' if n < 2 else y}")
        x = self.spread(list(extra), 2)
        g = [rd[0:2], x[0], rd[2:4], x[1]] if NQ == 2 else [rd[0:2] + x[0], rd[2:4] + x[1]]
        if adv and n % 8 in (4, 5) and n // 8 < 7 and reads:
            g[-1] += [f"v_add_u32 v{vOR+2*hb+k}, s{sSL+(i+1)%3}, v{vORB+2*hb+k}" for k in range(2)]
        self.weave(mf, g)
    @property
    def PUBLISH1(self): return [f"s_mov_b64 exec, {0xfe if self.flags[0] == 'o' else 1}", f"buffer_store_dwordx2 {vr(vTAG,2)}, v{vFOWN}, {sr(sWS)}, 0 offen {self.fst}", "s_mov_b64 exec, -1"]

    def tail(self):
        A = self.A; NQ = self.NQ; NL = 4 * NQ
        poll = f"buffer_load_dwordx2 {vr(vPOLL,2)}, v{vF1P}, {sr(sWS)}, 0 offen {self.fld}"
        self.emit(self.stamp(4))
        p0 = "s_nop 0"
        if self.pollpos == 0: A(poll)
        self.sec_P(vSA, vSB, None, self.vreads(0, 1), None, 12, bar=False)
        if self.pollpos == 1: A(poll)
        if self.pollpos == 2: p0 = poll
        e, c = self.softmax(vSB, 0)
        self.emit(self.vreads(0, 1)[8:] + e[0:3] + c[0:1] + e[3:5] + c[1:2] + e[5:7] + c[2:3] + e[7:8])
        self.emit([f"s_lshl_b32 s{sT0}, s{sJ}, 15"] + c[3:4] + [f"s_add_u32 s{sT0}, s{sT0}, s{sOB}", f"s_add_u32 s{sT1}, s{sT0}, 4096"])
        def norm(q, packed):
            r = []
            for s in range(4):
                src = [vO + 8 * (2 * s + h) + 4 * q + i for h in range(2) for i in range(4)]
                for k in range(4):
                    if 4 * s + k >= packed: r.append(f"v_pk_mul_f32 {vr(src[2*k],2)}, {vr(src[2*k],2)}, {vr(vT+2*q,2)}")
                    else: r += [f"v_mul_f32 v{x}, v{x}, v{vT+2*q}" for x in src[2 * k:2 * k + 2]]
                    r.append(f"v_cvt_pk_bf16_f32 v{vQ+16*q+4*s+k}, v{src[2*k]}, v{src[2*k+1]}")
                r.append(f"buffer_store_dwordx4 {vr(vQ+16*q+4*s)}, v{vL16}, {sr(sWS)}, s{sT0+q} offen offset:{1024*s} sc1")
            return r
        oa = [f"v_add_u32 v{vOR+k}, s{sSL}, v{vORB+k}" for k in range(4)]
        if NQ == 2:
            f, d = self.softmax(vSB, 1)
            n0 = norm(0, 6)
            g = self.spread(f[0:3] + d[0:1] + f[3:5] + d[1:2] + f[5:7] + d[2:3] + f[7:8], 7) + [d[3:4] + [f"v_rcp_f32 v{vT}, v{vL}"], [p0, f"v_mov_b32 v{vT+1}, v{vT}"]]
            g += [[]] + self.spread(n0[:19], 8)
            self.weave(self.pvs(), g)
            self.emit([f"v_rcp_f32 v{vT+2}, v{vL+4}"] + oa + [f"v_mov_b32 v{vT+3}, v{vT+2}"] + n0[19:] + norm(1, 0))
        else:
            self.weave(self.pvs(), [[], [], [], [], [p0], oa[:2], oa[2:], ["s_nop 0"], [f"v_rcp_f32 v{vT}, v{vL}", "s_nop 3"]])
            self.emit([f"v_mov_b32 v{vT+1}, v{vT}"] + norm(0, 0))
        self.emit(self.stamp(5))
        A(f"""
        s_waitcnt vmcnt({NL})
        v_cmp_eq_u64 vcc, {vr(vTAG,2)}, {vr(vPOLL,2)}
        s_mov_b32 s{sPEND}, 0xfe
        s_barrier
        s_and_b32 s{sRDY}, vcc_lo, 0xfe
        """)
        self.emit(self.woreads(0) + self.woreads(1))
        if self.dump == "o": A("s_waitcnt vmcnt(0)\ns_endpgm")
        A(f"s_bcnt1_i32_b32 s{sT0}, s{sRDY}\ns_cmp_ge_u32 s{sT0}, {self.nfast}\ns_cbranch_scc0 L_slow_{NQ}\nL_fast_{NQ}:")
        look = [f"v_cmp_eq_u64 vcc, {vr(vTAG,2)}, {vr(vPOLL,2)}", "s_nop 0", f"s_or_b32 s{sRDY}, s{sRDY}, vcc_lo"]
        if self.apoll: A(poll)
        for p in (1, 2):
            self.emit(self.select(p, False))
            for n in range(4): self.ostep(4 * (p - 1) + n, extra=[self.oload(p, NQ * n + q) for q in range(NQ)])
        A(f"s_waitcnt vmcnt({2*NL})")
        self.emit(self.PUBLISH1 + (look if self.apoll else []))
        A(f"L_common_{NQ}:")
        self.emit(self.stamp(6))
        prep = [f"s_lshl_b32 s{sD}, s{sG}, 11", f"s_add_u32 s{sD}, s{sD}, s{sPBs}"]
        for v in (1, 2, 3): prep += [f"s_xor_b32 s{sT0}, s{sG}, {v}", f"s_lshl_b32 s{sT1}, s{sT0}, 13", f"s_add_u32 s{sN0+v-1}, s{sT1}, s{sD}", f"s_lshl_b32 s{sRO[v-1]}, s{sT0}, 11"]
        prep += [f"s_lshl_b32 s{sD}, s{sG}, 13", f"s_add_u32 s{sD}, s{sD}, s{sPBs}"] + [f"s_add_u32 s{x}, s{x}, s{sD}" for x in sRO]
        prep += [f"v_mov_b32 v{vGS+8*v+4*q+1+2*k}, v{vTAG+k}" for v in range(3) for q in range(NQ) for k in range(2)]
        if self.prepoll: prep += [f"v_mov_b32 v{vF2P}, s{sRO[0]}", f"v_writelane_b32 v{vF2P}, s{sRO[1]}, 1", f"v_writelane_b32 v{vF2P}, s{sRO[2]}, 2",
                 f"v_add_u32 v{vF2P}, {1024*(NQ-1)+self.probe}, v{vF2P}"]
        prep = self.spread(prep, 8)
        vm = [(1, k) for k in range(NL)] + [(2, k) for k in range(NL)]
        for i in range(1, 8):
            sel = self.select(i + 2, True) if i < 6 else []
            ld = self.spread([(i + 2, k) for k in range(NL)] if i < 6 else [], 8, 2)
            for h in range(8):
                need = [(i, NQ * (h // 2) + NQ - 1)] if h % 2 == 0 else []
                ex = [self.oload(*x) for x in ld[h]]
                if h == 0:
                    ex = sel[:6]
                    if 2 <= i < 6 and self.apoll: need.append(("poll", i - 1)); ex = ["\n".join(look + sel[:1])] + sel[1:6]
                if h == 1:
                    ex = sel[6:]
                    if i < 5 and self.apoll: ex = ex + [poll]; ld[1] = [("poll", i)]
                if i == 6 and self.gran: ex = ex + prep[h]
                w = min(len(vm) - 1 - vm.index(x) for x in need) if need else None
                self.ostep(8 * i + h, w, extra=ex)
                vm += ld[h]
        self.emit(self.stamp(7))
        if self.gran: self.exchange_tagged()
        else: self.exchange_flagged()
        if self.eps:
            for i in range(4 * NQ): A(f"v_mul_f32 v{vY+i}, {f2u(1+self.eps):#x}, v{vY+i}")
        for i in range(2 * NQ): A(f"v_cvt_pk_bf16_f32 v{vP+i}, v{vY+2*i}, v{vY+2*i+1}")
        A(f"""
        s_nop 1
        v_permlane16_swap_b32 v{vP}, v{vP+2}
        v_permlane16_swap_b32 v{vP+1}, v{vP+3}
        buffer_store_dwordx4 {vr(vP)}, v{vOUTA}, {sr(sOUT)}, 0 offen
        """)
        if self.stamps and NQ == 2:
            A("s_waitcnt vmcnt(0)")
            self.emit(self.stamp(10))
            A(f"""
            s_waitcnt lgkmcnt(0)
            s_cmp_lg_u32 s{sW}, 0
            s_cbranch_scc1 L_end
            s_add_u32 s{sX}, s18, {STAMP_OFF}
            s_addc_u32 s{sX+1}, s19, 0
            s_mov_b32 s{sX+2}, 0x100000
            s_lshl_b32 s{sT0}, s2, 8
            v_mov_b32 v4, s{sT0}
            s_mov_b64 exec, 1
            """)
            if self.stamps == "dbg":
                A(f"s_cmp_lg_u32 s2, 37\ns_cbranch_scc1 L_end\nv_mov_b32 v5, 0")
                for i in range(self.nst):
                    A(f"s_sub_u32 s{sT0}, s{STAMP0+2*i}, s{STAMP0}\nv_mov_b32 v2, s{sT0}\nbuffer_store_dword v2, v5, {sr(sDBG)}, 0 offen offset:{8+4*i}\ns_nop 1")
            for i in range(self.nst):
                A(f"v_mov_b32 v2, s{STAMP0+2*i}\nv_mov_b32 v3, s{STAMP0+2*i+1}\nbuffer_store_dwordx2 v[2:3], v4, {sr(sX)}, 0 offen offset:{8*i}\ns_nop 1")
        A("L_end:\ns_endpgm" if NQ == 2 else "s_endpgm")
    def exchange_flagged(self):
        A = self.A; NQ = self.NQ
        A(f"s_lshl_b32 s{sD}, s{sG}, 11\ns_add_u32 s{sD}, s{sD}, s{sPBs}")
        for v in (1, 2, 3):
            A(f"s_xor_b32 s{sT0}, s{sG}, {v}\ns_lshl_b32 s{sT0}, s{sT0}, 13\ns_add_u32 s{sN0+v-1}, s{sT0}, s{sD}")
        for v in (1, 2, 3):
            for q in range(NQ):
                A(f"buffer_store_dwordx4 {vr(vY+8*v+4*q)}, v{vL16}, {sr(sWS)}, s{sN0+v-1} offen offset:{1024*q} sc1")
        A(f"s_lshl_b32 s{sD}, s{sG}, 13\ns_add_u32 s{sD}, s{sD}, s{sPBs}")
        for v in (1, 2, 3):
            A(f"s_xor_b32 s{sT0}, s{sG}, {v}\ns_lshl_b32 s{sT0}, s{sT0}, 11\ns_add_u32 s{sN0+v-1}, s{sT0}, s{sD}")
        A(f"""
        s_waitcnt vmcnt(0)
        s_mov_b64 exec, {0xe if self.flags[1] == 'o' else 2}
        buffer_store_dwordx2 {vr(vTAG,2)}, v{vF2S}, {sr(sWS)}, 0 offen {self.fst}
        s_mov_b64 exec, -1
        """)
        self.emit(self.stamp(8))
        self.spin(f"L_p2_{NQ}", vF2P, sWS, f"v_cmp_ne_u64 vcc, {vr(vTAG,2)}, {vr(vPOLL,2)}")
        self.emit(self.stamp(9))
        for v in (1, 2, 3):
            for q in range(NQ):
                A(f"buffer_load_dwordx4 {vr(vY+8*v+4*q)}, v{vL16}, {sr(sWS)}, s{sN0+v-1} offen offset:{1024*q} sc1")
        for v in (1, 2, 3):
            A(f"s_waitcnt vmcnt({NQ*(3-v)})")
            for i in range(4 * NQ): A(f"v_add_f32 v{vY+i}, v{vY+i}, v{vY+8*v+i}")

    def exchange_tagged(self):
        A = self.A; NQ = self.NQ
        A(f"s_mov_b32 s{sPEND}, 7\ns_mov_b32 s{sSPIN}, 0\ns_nop {1 if NQ == 2 else 3}")
        for v in (2, 3, 1):
            for q in range(NQ):
                y = vY + 8 * v + 4 * q; g = vGS + 8 * (v - 1) + 4 * q
                A(f"v_cvt_pk_bf16_f32 v{g}, v{y}, v{y+1}\nv_cvt_pk_bf16_f32 v{g+2}, v{y+2}, v{y+3}")
                A(f"buffer_store_dwordx4 {vr(g)}, v{vL16}, {sr(sWS)}, s{sN0+v-1} offen offset:{1024*q} sc1")
        self.emit(self.stamp(8))
        if not self.prepoll:
            A(f"""
            s_branch L_g1_{NQ}
            L_g_{NQ}:
            s_add_u32 s{sSPIN}, s{sSPIN}, 1
            s_cmp_gt_u32 s{sSPIN}, {self.spinmax}
            s_cbranch_scc1 L_gd_{NQ}
            {f"s_sleep {self.sleep}" if self.sleep else ""}
            L_g1_{NQ}:
            s_mov_b32 s{sRDY}, s{sPEND}
            """)
        else: A(f"""
        L_g_{NQ}:
        buffer_load_dword v1, v{vF2P}, {sr(sWS)}, 0 offen sc1
        s_add_u32 s{sSPIN}, s{sSPIN}, 1
        s_waitcnt vmcnt(0)
        v_cmp_eq_u32 vcc, v{vTAG+1}, v1
        s_cmp_gt_u32 s{sSPIN}, {self.spinmax}
        s_cbranch_scc1 L_gd_{NQ}
        s_and_b32 s{sRDY}, vcc_lo, s{sPEND}
        s_cbranch_scc0 L_g_{NQ}
        """)
        for v in range(3):
            A(f"s_bitcmp1_b32 s{sRDY}, {v}\ns_cbranch_scc0 L_gl{v}_{NQ}")
            for q in range(NQ): A(f"buffer_load_dwordx4 {vr(vGR+8*v+4*q)}, v{vL16}, {sr(sWS)}, s{sRO[v]} offen offset:{1024*q} sc1")
            A(f"L_gl{v}_{NQ}:")
        A("s_waitcnt vmcnt(0)")
        for v in range(3):
            r = vGR + 8 * v
            A(f"s_bitcmp1_b32 s{sRDY}, {v}\ns_cbranch_scc0 L_gc{v}_{NQ}")
            A(f"v_xor_b32 v1, v{vTAG}, v{r+1}\nv_xor_b32 v2, v{vTAG+1}, v{r+3}")
            if NQ == 2: A(f"v_xor_b32 v3, v{vTAG}, v{r+5}\nv_xor_b32 v4, v{vTAG+1}, v{r+7}\nv_or3_b32 v1, v1, v3, v4")
            A(f"v_or_b32 v1, v1, v2\nv_cmp_ne_u32 vcc, 0, v1\ns_cbranch_vccnz L_gc{v}_{NQ}\ns_bitset0_b32 s{sPEND}, {v}")
            for k in range(2 * NQ):
                A(f"v_lshlrev_b32 v1, 16, v{r+2*k}\nv_and_b32 v2, 0xffff0000, v{r+2*k}\nv_add_f32 v{vY+2*k}, v{vY+2*k}, v1\nv_add_f32 v{vY+2*k+1}, v{vY+2*k+1}, v2")
            A(f"L_gc{v}_{NQ}:")
        A(f"""
        s_cmp_lg_u32 s{sPEND}, 0
        s_cbranch_scc1 L_g_{NQ}
        L_gd_{NQ}:
        """)
        self.emit(self.stamp(9))

    def tail_slow(self):
        A = self.A; NQ = self.NQ
        A(f"L_slow_{NQ}:\ns_waitcnt lgkmcnt(0)")
        for n in range(8): self.ostep(n, reads=n < 6, adv=False)
        A(f"buffer_load_dwordx2 {vr(vPOLL,2)}, v{vF1P}, {sr(sWS)}, 0 offen {self.fld}\ns_waitcnt vmcnt(1)")
        self.emit(self.PUBLISH1)
        A(f"s_waitcnt vmcnt(1)\nv_cmp_eq_u64 vcc, {vr(vTAG,2)}, {vr(vPOLL,2)}\ns_nop 0\ns_mov_b32 s{sRDY}, vcc_lo")
        self.emit(self.select(1, True))
        for k in range(4 * NQ): A(self.oload(1, k))
        for k in range(4): A(f"v_add_u32 v{vOR+k}, s{sSL+1}, v{vORB+k}")
        self.emit(self.woreads(8) + self.woreads(9))
        self.emit(self.select(2, True))
        for k in range(4 * NQ): A(self.oload(2, k))
        A(f"s_branch L_common_{NQ}")

    def capture(self, *fs):
        m = self.mark()
        for f in fs: f()
        r = self.A.l[m:]; del self.A.l[m:]
        return r
    def path(self, NQ):
        self.NQ = NQ; vm0 = list(self.vm)
        main = autowait(self.capture(self.qphase, self.attn_prologue, self.attn_loop, lambda: self.A(f"L_tail_{NQ}:"), self.tail))
        slow = autowait(self.capture(self.tail_slow))
        rare = self.capture(self.rescale, self.notag)
        self.vm = vm0
        ix = lambda lab: [l.strip() for l in main].index(lab)
        la, ll, le, lf, lc = ix(f"L_a_{NQ}:"), ix(f"L_last_{NQ}:"), ix(f"L_tail_{NQ}:"), ix(f"L_fast_{NQ}:"), ix(f"L_common_{NQ}:")
        errs = hazard.check(self.segs["pro"] + main[:ll] + main[la:], f"main{NQ}")
        errs += hazard.check(main[le:lf] + slow + main[lc:], f"slow{NQ}")
        out = []
        for l in main[la:lf]:
            out.append(l)
            mm = re.match(r"s_cbranch_vccnz L_rs_(\d+)_", l.strip())
            if mm: out += ["s_nop 0", "s_nop 0"] + self.segs[f"rs{'BA'[int(mm.group(1))%2]}{NQ}"] + ["s_nop 0", "s_nop 0"]
        errs += hazard.check(out, f"rare{NQ}")
        return errs, main[:ll] + [f"    s_branch L_last_{NQ}"], main[ll:] + slow, rare

    def build(self):
        self.polls = []
        m = self.mark(); self.prologue(); self.seg("pro", m)
        errs, hot, tail, rare = self.path(2)
        if self.one:
            e1, h1, t1, r1 = self.path(1)
            errs += e1; hot += ["L_one:"] + h1; tail += t1; rare += r1
        if self.stag is not None:
            b = self.capture(self.bfirst)
            i = hot.index("L_one:") if self.one else len(hot)
            hot[i:i] = b
            errs += [e for e in hazard.check(b, "bfirst") if "pending" not in e]
        self.A.l += hot
        self.loop_extras()
        self.A("L_hot_end:")
        self.A.l += tail
        self.poll_blocks()
        self.A("L_tail_end:")
        self.A.l += rare
        errs += [e for e in hazard.check(self.segs["x"], "extras") if f"{vTAG}" not in e and f"{vPOLL}" not in e]
        errs = [e for e in errs if f"buffer_load_dword v{vMX1}, v{vMX1}" not in e]
        for e in sorted(set(errs)): print("HAZARD", e, file=sys.stderr)
        assert self.nst <= 13
        return kernel_file([(KN, 256, 256, 10 * SLOT)], {KN: (self.A.text(), 512, 256, 102)}, NOTES)

if __name__ == "__main__":
    import argparse
    ap = argparse.ArgumentParser()
    ap.add_argument("-o", default="main.s"); ap.add_argument("--stamps", nargs="?", const="ws", default=None)
    ap.add_argument("--kv", default="nt"); ap.add_argument("--xw", default=""); ap.add_argument("--wo", default="")
    ap.add_argument("--dump", default=None); ap.add_argument("-T", type=float, default=8.0)
    ap.add_argument("--nopf", action="store_true"); ap.add_argument("--nodma", action="store_true")
    ap.add_argument("--sleep", type=int, default=1); ap.add_argument("--noone", action="store_true")
    ap.add_argument("--nowopf", action="store_true"); ap.add_argument("--dpos", type=int, default=1)
    ap.add_argument("--stag", type=int, default=None); ap.add_argument("--bpf", default="ok")
    ap.add_argument("--lim", type=lambda x: int(x, 16), default=0); ap.add_argument("--limw", type=int, default=8)
    ap.add_argument("--map", default="4x8"); ap.add_argument("--wosteps", default="4444")
    ap.add_argument("--warm", action="store_true"); ap.add_argument("--sleep1", type=int, default=4); ap.add_argument("--flags", default="so"); ap.add_argument("--fld", default="sc1"); ap.add_argument("--fst", default="sc1")
    ap.add_argument("--gran", action="store_true")
    ap.add_argument("--probe", type=int, default=1020)
    ap.add_argument("--apoll", action="store_true"); ap.add_argument("--prepoll", action="store_true"); ap.add_argument("--eps", type=float, default=0)
    ap.add_argument("--kvs", default="")
    ap.add_argument("--rot", default="24")
    ap.add_argument("--pollpos", type=int, default=1); ap.add_argument("--nfast", type=int, default=2)
    ap.add_argument("--loopw", type=int, default=12); ap.add_argument("--loopn", type=int, default=6)
    ap.add_argument("--split", action="store_true")
    ap.add_argument("--par", type=int, default=0)
    a = ap.parse_args()
    g = Gen(stamps=a.stamps, kv=a.kv, xw=a.xw, wo=a.wo, dump=a.dump, T=a.T, pf=not a.nopf, nodma=a.nodma, sleep=a.sleep, one=not a.noone, wopf=not a.nowopf, dpos=a.dpos, stag=a.stag, bpf=a.bpf, lim=a.lim, limw=a.limw, map=a.map, wosteps=tuple(int(x) for x in a.wosteps), flags=a.flags, warm=a.warm, sleep1=a.sleep1, gran=a.gran, probe=a.probe, apoll=a.apoll, prepoll=a.prepoll, eps=a.eps, kvs=a.kvs, rot=a.rot, pollpos=a.pollpos, split=a.split, par=a.par, loopw=a.loopw, loopn=a.loopn, nfast=a.nfast, fld=a.fld, fst=a.fst)
    open(a.o, "w").write(g.build())
    print("stamps:", g.nst)
```

```python
import sys, math, struct, re
from asmlib import *
import hazard

STAMP_OFF = 240 << 20
SLOT = 16384
PB = 8 << 20
F1 = 16 << 20
F2 = F1 + (128 << 10)
EPOCH = F2 + (128 << 10)
WS_SIZE = EPOCH + 128
SCALE = math.log2(math.e) / math.sqrt(128.0)
def f2u(x): return struct.unpack("<I", struct.pack("<f", x))[0]

sX, sWQ, sK, sV, sWO, sWS, sOUT, sDBG = 20, 24, 28, 32, 36, 40, 44, 48
sW, sB, sH, sJ, sG, sW4K, sCC, sT = 52, 53, 54, 55, 56, 57, 58, 59
sT0, sT1 = 60, 61
sRET = 62
sKSO, sVSO = 64, 65
sN0 = 66
sD = 69
sSC = 70
sXM = 71
sAT = 72
sOB = 73
sPBs = 74
sSPIN = 75
sRO = (64, 65, 71)
sGB = 3
sLIM = 14
sW4B = 6
sSOA, sSOB = 4, 5
sRDY, sPEND = 7, 8
sSL = 9
sO0 = 12
STAMP0 = 76
vKR, vVR, vKD, vVD, vXD, vWD, vOD, vORB, vOR = 8, 12, 20, 24, 28, 32, 36, 40, 44
vMX0, vMX1 = 48, 49
vCNT, vF1P, vF2P, vL16, vOUTA, vFOWN = 50, 51, 52, 53, 54, 55
vONE = 56; vT = 60
vTAG = 184
vPOLL = 186
vF2S = 188
vGS, vGR = 128, 152
vO, vSA, vSB, vCI, vL, vP, vQ, vY = 64, 128, 144, 160, 168, 176, 192, 224
vWR, vXR = 128, 144
def qacc(db, q): return (160 + 8 * db if db < 3 else 148 if db == 3 else 192 + 8 * db) + 4 * q
aK, aV = 0, 32
XSL, WSL = (1, 2, 6, 8), (4, 5, 7, 9)
def vr(b, n=4): return f"v[{b}:{b+n-1}]"
def ar(b, n=4): return f"a[{b}:{b+n-1}]"
def sr(b, n=4): return f"s[{b}:{b+n-1}]"
MF = "v_mfma_f32_16x16x32_bf16"

def autowait(lines, slack=20):
    out = []; q = []; n = 0
    for l in lines:
        d = hazard.parse(l)
        if d is None: out.append(l); continue
        if d["mn"] == "s_waitcnt":
            m = re.search(r"lgkmcnt\((\d+)\)", d["text"])
            if m: q = q[max(0, len(q) - int(m.group(1))):]
        else:
            use = set(d["r"]) | set(d["w"])
            need = max([i for i, (w, _) in enumerate(q) if use & w], default=-1)
            if need >= 0:
                while need + 1 < len(q) and n - q[need + 1][1] >= slack: need += 1
                need = max(need, len(q) - 16)
                left = len(q) - 1 - need
                prev = out[-1].strip()
                if prev.startswith("s_waitcnt vmcnt") and "lgkm" not in prev: out[-1] = out[-1] + f" lgkmcnt({left})"
                else: out.append(f"    s_waitcnt lgkmcnt({left})")
                q = q[need + 1:]
            if d["kind"] == "ds": q.append((set(d["w"]), n))
        out.append(l); n += 1
    return out

NOTES = """; One workgroup per (batch, head), four waves holding 2/2/2/1 blocks of 16 queries (written by my generator script).
;  1. Q^T = Wq_h^T x_b^T through LDS (LDS-DMA, transposing reads), scaled by log2(e)/sqrt(128) and rounded to bf16.
;     max (O, l rescaled) whenever a score exceeds it by more than 8.
;  3. Output projection in groups of 8 heads x 64 columns: O goes through ws (write-through stores, drained, then a flag),
"""

class Gen:
    def __init__(self, **kw):
        self.A = Asm(); self.nst = 0; self.segs = {}
        self.stamps = None; self.kv = "nt"; self.xw = "nt"; self.wo = "nt"; self.dump = None; self.T = 8.0
        self.pf = True; self.nodma = False; self.sleep = 4; self.one = True; self.wopf = True; self.dpos = 1; self.stag = None; self.bpf = 'ok'; self.lim = 0; self.limw = 8; self.map = '4x8'; self.wosteps = (4, 4, 4, 4); self.flags = 'so'; self.warm = False; self.sleep1 = 4; self.gran = True; self.probe = 1020; self.apoll = False; self.eps = 0; self.prepoll = False; self.spinmax = 4000000; self.pollpos = 1; self.tlb = False; self.kvtouch = False; self.krot = ''; self.limp = 0; self.split = False; self.par = 0; self.loopw = 12; self.loopn = 6; self.nfast = 2; self.rot = '24'; self.fld = 'sc1'; self.fst = 'sc1'
        self.kvsched = {5: ["K0", "V0"], 6: ["K1"], 7: ["V1"], 8: ["K2"], 9: ["V2"]}
        if kw.get("kvs"):
            self.kvsched = {}
            for it, c in zip(("K0", "V0", "K1", "V1", "K2", "V2"), kw["kvs"]): self.kvsched.setdefault(int(c), []).append(it)
        self.__dict__.update(kw)
        self.vm = []
    def stamp(self, k):
        sets = {"ws": range(11), "dbg": range(11), "cyc": range(11), "loop": (0, 1, 2, 3, 11, 12, 13, 14, 4, 5, 7, 10), "q": (0, 1, 20, 21, 22, 23, 25, 27, 2, 3, 4, 10)}
        if not self.stamps or k not in sets[self.stamps]: return []
        i = list(sets[self.stamps]).index(k); self.nst = max(self.nst, i + 1)
        return [f"{'s_memtime' if self.stamps == 'cyc' else 's_memrealtime'} s[{STAMP0+2*i}:{STAMP0+2*i+1}]"]
    def mark(self): return len(self.A.l)
    def seg(self, name, a): self.segs[name] = self.A.l[a:]
    def emit(self, l):
        for x in l: self.A(x)
    def weave(self, mf, gaps):
        assert len(mf) == len(gaps)
        for m, g in zip(mf, gaps):
            self.A(m); self.emit(g)
    def younger(self, tag): return len(self.vm) - 1 - max(i for i, t in enumerate(self.vm) if t == tag)

    def dma(self, v, srd, so, flag, n=4):
        return [f"buffer_load_dwordx4 v{v+p}, {sr(srd)}, s{so} offen offset:{1024*p} {flag} lds" for p in range(n)]
    def dma_k(self): return ["s_nop 0"] * 4 if self.nodma else self.dma(vKD, sK, sKSO, self.kv)
    def dma_v(self): return ["s_nop 0"] * 4 if self.nodma else self.dma(vVD, sV, sVSO, self.kv)
    def m0(self, slot): return f"s_add_u32 m0, s{sW4K}, {slot*SLOT}"
    def next_chunk(self):
        return [f"s_lshl_b32 s{sSOA}, s{sCC}, 7", f"s_lshl_b32 s{sSOB}, s{sCC}, 19",
                f"s_add_u32 s{sCC}, s{sCC}, 1", f"s_and_b32 s{sCC}, s{sCC}, 7"]

    def prologue(self):
        A = self.A
        self.emit(self.stamp(0))
        A(f"""
        s_cmp_ge_u32 s2, 256
        s_cbranch_scc1 L_end
        s_load_dwordx16 s[4:19], s[0:1], 0
        v_lshrrev_b32 v1, 6, v0
        v_and_b32 v0, 63, v0
        s_and_b32 s{sT0}, s2, 7
        v_readfirstlane_b32 s{sW}, v1
        """)
        if self.pf:
            A(f"""
            s_getpc_b64 s[{sRET}:{sRET+1}]
            L_pcref:
            v_lshlrev_b32 v{vT}, 13, v1
            v_lshl_add_u32 v{vT}, v0, 7, v{vT}
            v_min_u32 v{vT}, L_hot_end - L_pcref, v{vT}
            global_load_dword v{vMX0}, v{vT}, s[{sRET}:{sRET+1}]
            """)
        A(f"""
        s_lshr_b32 s{sG}, s{sT0}, 1
        s_and_b32 s{sT0}, s{sT0}, 1
        s_lshr_b32 s{sAT}, s2, 3
        """)
        if self.map == "8x4":
            A(f"""
            s_and_b32 s{sD}, s{sAT}, 3
            s_lshr_b32 s{sJ}, s{sAT}, 2
            s_lshl_b32 s{sB}, s{sT0}, 2
            s_add_u32 s{sB}, s{sB}, s{sD}
            s_lshl_b32 s{sT1}, s{sD}, 1
            s_add_u32 s{sCC}, s{sJ}, s{sT1}
            """)
        else:
            A(f"""
            s_and_b32 s{sB}, s{sAT}, 7
            s_lshr_b32 s{sD}, s{sAT}, 3
            {f"s_lshl_b32 s{sJ}, s{sT0}, 2" if not self.par else f"s_xor_b32 s{sT0}, s{sT0}, {self.par-1}"}
            {f"s_add_u32 s{sJ}, s{sJ}, s{sD}" if not self.par else f"s_lshl1_add_u32 s{sJ}, s{sD}, s{sT0}"}
            s_mul_i32 s{sT1}, s{sD}, {self.rot[1]}
            s_mul_i32 s{sCC}, s{sB}, {self.rot[0]}
            s_add_u32 s{sCC}, s{sCC}, s{sT1}
            """)
        A(f"""
        s_lshl_b32 s{sH}, s{sG}, 3
        s_add_u32 s{sH}, s{sH}, s{sJ}
        s_and_b32 s{sCC}, s{sCC}, 7
        s_lshl_b32 s{sW4K}, s{sW}, 12
        v_lshrrev_b32 v2, 4, v0
        v_and_b32 v3, 15, v0
        v_lshrrev_b32 v6, 3, v0
        v_and_b32 v7, 7, v0
        s_lshl_b32 s{sT0}, s{sW}, 5
        v_add_u32 v5, s{sT0}, v6
        v_xor_b32 v1, v2, v7
        v_lshlrev_b32 v1, 4, v1
        v_lshl_add_u32 v{vXD}, v5, 10, v1
        v_xor_b32 v1, 64, v1
        v_lshl_add_u32 v{vXD+1}, v5, 10, v1
        s_cmp_eq_u32 s{sW}, 3
        s_cselect_b32 s{sT0}, 16384, 0
        s_sub_u32 s{sT0}, 14336, s{sT0}
        v_add_u32 v{vXD+1}, 7168, v{vXD+1}
        v_add_u32 v{vXD+2}, s{sT0}, v{vXD}
        v_add_u32 v{vXD+3}, s{sT0}, v{vXD+1}
        v_lshlrev_b32 v4, 1, v2
        v_xor_b32 v4, v4, v3
        v_lshlrev_b32 v4, 4, v4
        s_lshl_b32 s{sT0}, s{sW}, 4
        v_add_u32 v1, s{sT0}, v2
        v_lshl_add_u32 v{vWD}, v1, 13, v4
        s_mul_i32 s{sT0}, s{sB}, 114688
        s_lshl_b32 s{sT1}, s{sH}, 8
        v_xor_b32 v{vWD+2}, 128, v{vWD}
        v_add_u32 v{vWD+1}, {4*8192-1024}, v{vWD}
        v_add_u32 v{vWD+3}, {3*(4*8192-1024)}, v{vWD+2}
        v_add_u32 v{vWD+2}, {2*(4*8192-1024)}, v{vWD+2}
        s_mov_b32 s{sX+2}, 114688
        s_mov_b32 s{sX+3}, 0x20000
        s_sub_u32 s{sWQ+2}, 0x400000, s{sT1}
        s_mov_b32 s{sWQ+3}, 0x20000
        {self.m0(XSL[0])}
        s_waitcnt lgkmcnt(0)
        s_add_u32 s{sX}, s4, s{sT0}
        s_addc_u32 s{sX+1}, s5, 0
        s_add_u32 s{sWQ}, s10, s{sT1}
        s_addc_u32 s{sWQ+1}, s11, 0
        """)
        def pair(c):
            self.emit(self.next_chunk())
            self.emit(self.dma(vXD, sX, sSOA, self.xw))
            A(self.m0(WSL[c]) + "\ns_nop 0")
            self.emit(self.dma(vWD, sWQ, sSOB, self.xw))
            self.vm += [f"P{c}"] * 8
        if self.stag is not None:
            A(f"s_bitcmp{1-self.stag}_b32 s{sB}, 0\ns_cselect_b32 s{sGB}, 0, {SLOT}\ns_cbranch_scc0 L_bfirst\nL_pairs:")
        elif self.krot == "i": A(f"s_lshl_b32 s{sGB}, s{sAT}, 14\ns_and_b32 s{sGB}, s{sGB}, 0x3ffff")
        elif self.krot == "h": A(f"s_mul_i32 s{sGB}, s2, 0x9e3779b1\ns_lshr_b32 s{sGB}, s{sGB}, 28\ns_lshl_b32 s{sGB}, s{sGB}, 14")
        else: A(f"s_mov_b32 s{sGB}, 0")
        pair(0)
        A(self.m0(XSL[1])); pair(1)
        A(f"""
        s_add_u32 s{sOUT}, s14, s{sT0}
        s_addc_u32 s{sOUT+1}, s15, 0
        s_lshl_b32 s{sT0}, s{sB}, 5
        s_add_u32 s{sT0}, s{sT0}, s{sH}
        s_lshl_b32 s{sT0}, s{sT0}, 18
        s_add_u32 s{sK}, s6, s{sT0}
        s_addc_u32 s{sK+1}, s7, 0
        s_mov_b32 s{sK+2}, 0x40000
        s_mov_b32 s{sK+3}, 0x20000
        s_add_u32 s{sV}, s8, s{sT0}
        s_addc_u32 s{sV+1}, s9, 0
        s_mov_b32 s{sV+2}, 0x40000
        s_mov_b32 s{sV+3}, 0x20000
        s_add_u32 s{sW4B}, s{sW4K}, s{sGB}
        {f"s_bitcmp{self.limp}_b32 s2, 0" if self.lim else ""}
        {f"s_cselect_b32 s{sLIM}, {self.lim}, 0" if self.lim else ""}
        s_mov_b32 s{sOUT+2}, 114688
        s_mov_b32 s{sOUT+3}, 0x20000
        s_lshl_b32 s{sT0}, s{sG}, 20
        {f"s_and_b32 s{sT1}, s{sJ}, 4" if self.split else f"s_mov_b32 s{sT1}, s{sJ}"}
        s_lshl_b32 s{sT1}, s{sT1}, 7
        s_add_u32 s{sT0}, s{sT0}, s{sT1}
        s_add_u32 s{sWO}, s12, s{sT0}
        s_addc_u32 s{sWO+1}, s13, 0
        s_sub_u32 s{sWO+2}, 0x400000, s{sT0}
        s_mov_b32 s{sWO+3}, 0x20000
        s_mov_b32 s{sWS}, s18
        s_mov_b32 s{sWS+1}, s19
        s_mov_b32 s{sWS+2}, {WS_SIZE}
        s_mov_b32 s{sWS+3}, 0x20000
        s_mov_b32 s{sDBG}, s16
        s_mov_b32 s{sDBG+1}, s17
        s_mov_b32 s{sDBG+2}, 256
        s_mov_b32 s{sDBG+3}, 0x20000
        s_mov_b32 s{sSC}, {f2u(SCALE):#x}
        """)
        if self.map == "8x4":
            A(f"""
            s_lshl_b32 s{sD}, s{sAT}, 2
            s_add_u32 s{sD}, s{sD}, s{sW}
            s_lshl_b32 s{sD}, s{sD}, 13
            s_sub_u32 s{sD}, s{sD}, s{sT1}
            v_lshl_add_u32 v{vMX1}, v0, 7, s{sD}
            """)
        elif self.stag is not None:
            A(f"""
            s_lshl_b32 s{sT0}, s{sD}, 2
            s_lshr_b32 s{sT1}, s{sB}, 1
            s_add_u32 s{sT0}, s{sT0}, s{sT1}
            s_lshl_b32 s{sT0}, s{sT0}, 2
            s_add_u32 s{sT0}, s{sT0}, s{sW}
            s_lshl_b32 s{sT0}, s{sT0}, 14
            s_lshl_b32 s{sD}, s{sD}, 7
            s_sub_u32 s{sD}, s{sT0}, s{sD}
            s_lshl_b32 s{sT0}, s{sGB}, 12
            s_add_u32 s{sD}, s{sD}, s{sT0}
            v_lshrrev_b32 v{vMX1}, 2, v0
            v_lshl_add_u32 v{vMX1}, v{vMX1}, 10, s{sD}
            v_and_b32 v{vT}, 3, v0
            v_lshl_add_u32 v{vMX1}, v{vT}, 7, v{vMX1}
            """)
        else:
            A(f"""
            {f"s_mov_b32 s{sD}, 0" if self.split else f"s_lshl_b32 s{sD}, s{sD}, {8 if self.par else 7}"}
            s_lshl_b32 s{sT0}, s{sAT}, 2
            s_add_u32 s{sT0}, s{sT0}, s{sW}
            s_lshl_b32 s{sT0}, s{sT0}, 13
            s_sub_u32 s{sD}, s{sT0}, s{sD}
            v_bfe_u32 v{vMX1}, v0, 2, 3
            v_lshl_add_u32 v{vMX1}, v{vMX1}, 10, s{sD}
            v_and_b32 v{vT}, 3, v0
            v_lshl_add_u32 v{vMX1}, v{vT}, {8 if self.par else 7}, v{vMX1}
            """)
        A(f"""
        s_lshl_b32 s{sT1}, s{sJ}, 2
        s_lshr_b32 s{sT1}, 0x52419876, s{sT1}
        s_and_b32 s{sT1}, s{sT1}, 15
        s_lshl_b32 s{sSL}, s{sT1}, 14
        """)
        own = self.flags[0] == "o"; own2 = self.flags[1] == "o"
        A(f"""
        s_lshl_b32 s{sT0}, s{sB}, 2
        s_add_u32 s{sT0}, s{sT0}, s{sG}
        s_lshl_b32 s{sOB}, s{sT0}, 18
        s_lshl_b32 s{sT1}, s{sW}, 13
        s_add_u32 s{sOB}, s{sOB}, s{sT1}
        s_lshl_b32 s{sT0}, s{sT0}, 2
        s_add_u32 s{sT0}, s{sT0}, s{sW}
        s_lshl_b32 s{sT0}, s{sT0}, 10
        s_add_u32 s{sT0}, s{sT0}, {F1}
        v_add_u32 v{vT}, s{sJ}, v0
        v_and_b32 v{vT}, 7, v{vT}
        s_lshl_b32 s{sT1}, s{sJ}, 7
        {f"s_add_u32 s{sT1}, s{sT0}, s{sT1}" if own else f"s_mov_b32 s{sT1}, s{sT0}"}
        v_lshl_add_u32 v{vF1P}, v{vT}, 3, s{sT1}
        s_lshl_b32 s{sT1}, s{sJ}, 3
        s_add_u32 s{sT1}, s{sT0}, s{sT1}
        {f"v_lshl_add_u32 v{vFOWN}, v{vT}, 7, s{sT1}" if own else f"v_mov_b32 v{vFOWN}, s{sT1}"}
        s_lshl_b32 s{sT0}, s{sB}, 3
        s_add_u32 s{sT0}, s{sT0}, s{sJ}
        s_lshl_b32 s{sT0}, s{sT0}, 2
        s_add_u32 s{sT0}, s{sT0}, s{sW}
        s_lshl_b32 s{sPBs}, s{sT0}, 15
        s_add_u32 s{sPBs}, s{sPBs}, {PB}
        s_lshl_b32 s{sT0}, s{sT0}, 9
        s_add_u32 s{sT0}, s{sT0}, {F2}
        v_and_b32 v{vT}, 3, v0
        v_max_u32 v{vT}, 1, v{vT}
        v_xor_b32 v{vT}, s{sG}, v{vT}
        s_lshl_b32 s{sT1}, s{sG}, 7
        {f"s_add_u32 s{sT1}, s{sT0}, s{sT1}" if own2 else f"s_mov_b32 s{sT1}, s{sT0}"}
        v_lshl_add_u32 v{vF2P}, v{vT}, 3, s{sT1}
        s_lshl_b32 s{sT1}, s{sG}, 3
        s_add_u32 s{sT1}, s{sT0}, s{sT1}
        {f"v_lshl_add_u32 v{vF2S}, v{vT}, 7, s{sT1}" if own2 else f"v_mov_b32 v{vF2S}, s{sT1}"}
        {f'''v_mov_b32 v{vPOLL}, 0
        s_mov_b64 exec, 1
        buffer_load_dword v{vPOLL+1}, v{vPOLL}, {sr(sK)}, 0 offen nt
        buffer_load_dword v{vF2S+1}, v{vPOLL}, {sr(sV)}, 0 offen nt
        buffer_load_dword v{vF2S+2}, v{vPOLL}, {sr(sWO)}, 0 offen nt
        s_mov_b64 exec, -1''' if self.kvtouch else ""}
        v_mov_b32 v{vCNT}, {EPOCH}
        s_or_b32 s{sAT}, s2, s{sW}
        s_cbranch_scc1 L_noepoch
        buffer_load_dwordx2 {vr(vTAG,2)}, v{vCNT}, {sr(sWS)}, 0 offen sc1
        L_noepoch:
        """)
        if self.kvtouch: self.vm += ["touch"] * 3
        A(f"""
        v_lshrrev_b32 v6, 1, v3
        v_xor_b32 v6, v6, v2
        v_lshlrev_b32 v6, 4, v6
        v_lshl_add_u32 v6, v3, 7, v6
        s_add_u32 s{sT0}, s{sW4K}, {XSL[0]*SLOT}
        v_add_u32 v{vXR}, s{sT0}, v6
        v_xor_b32 v{vXR+1}, 64, v{vXR}
        v_add_u32 v{vXR+2}, {(XSL[2]-XSL[0])*SLOT}, v{vXR}
        v_add_u32 v{vXR+3}, {(XSL[2]-XSL[0])*SLOT}, v{vXR+1}
        v_bfe_u32 v{vT}, v0, 2, 2
        v_and_b32 v{vT+1}, 3, v0
        v_and_b32 v6, 1, v2
        v_lshl_add_u32 v6, v6, 2, v{vT}
        v_lshlrev_b32 v6, 5, v6
        v_lshl_add_u32 v6, v{vT+1}, 3, v6
        v_lshl_add_u32 v6, v{vT}, 8, v6
        v_lshl_add_u32 v{vVR}, v2, 10, v6
        v_lshl_add_u32 v6, v2, 11, v6
        v_add_u32 v{vWR}, {WSL[0]*SLOT}, v6
        """)
        for db in range(1, 8): A(f"v_xor_b32 v{vWR+db}, {db*32}, v{vWR}")
        for db in range(8): A(f"v_add_u32 v{vWR+8+db}, {(WSL[2]-WSL[0])*SLOT}, v{vWR+db}")
        late = [f"v_lshl_add_u32 v{vVD}, v1, 8, v4", f"v_xor_b32 v{vVD+1}, 128, v{vVD}", f"v_mov_b32 v{vVD+2}, v{vVD}", f"v_mov_b32 v{vVD+3}, v{vVD+1}"]
        for p in range(4):
            late += [f"v_add_u32 v4, {4*p}, v2", "v_xor_b32 v4, v4, v3", "v_lshlrev_b32 v4, 4, v4", f"v_lshl_add_u32 v{vKD+p}, v1, 8, v4"]
        self.emit(late); late = []
        A(self.m0(XSL[2])); pair(2)
        self.emit(self.stamp(1))
        late += [f"v_add_u32 v{vVR}, {3*SLOT}, v{vVR}"] + [f"v_xor_b32 v{vVR+db}, {db*32}, v{vVR}" for db in range(1, 8)]
        late += ["v_xor_b32 v6, v2, v3", "v_lshlrev_b32 v6, 4, v6", f"v_lshl_add_u32 v{vKR}, v3, 8, v6"]
        late += [f"v_xor_b32 v{vKR+s}, {s*64}, v{vKR}" for s in range(1, 4)]
        if self.split:
            A(f"s_bfe_u32 s{sT0}, s{sJ}, 0x10001\ns_and_b32 s{sT1}, s{sJ}, 1\ns_lshl_b32 s{sT1}, s{sT1}, 6\ns_lshl_b32 s{sN0}, s{sT0}, 7\ns_add_u32 s{sN0}, s{sN0}, s{sT1}"
              f"\ns_lshl_b32 s{sT0}, s{sT0}, 8\ns_sub_u32 s{sN0+1}, 320, s{sT0}")
            late += ["v_lshlrev_b32 v6, 1, v2", "v_xor_b32 v6, v6, v7", "v_lshrrev_b32 v4, 2, v6", f"v_mul_u32_u24 v4, s{sN0+1}, v4",
                     "v_lshl_add_u32 v6, v6, 4, v4", f"v_add_u32 v6, s{sN0}, v6", f"v_lshl_add_u32 v{vOD}, v5, 10, v6"]
        else:
            late += ["v_lshlrev_b32 v6, 1, v2", "v_xor_b32 v6, v6, v7", "v_lshlrev_b32 v6, 4, v6", f"v_lshl_add_u32 v{vOD}, v5, 10, v6"]
        late += [f"v_add_u32 v{vOD+p}, {p*7168}, v{vOD}" for p in range(1, 4)]
        late += ["v_and_b32 v6, 1, v2", "v_lshlrev_b32 v6, 1, v6", f"v_lshrrev_b32 v4, 1, v{vT}", "v_or_b32 v6, v6, v4", f"v_xor_b32 v6, s{sG}, v6",
                 "v_lshlrev_b32 v6, 5, v6", f"v_lshl_add_u32 v6, v{vT+1}, 3, v6", f"v_lshl_add_u32 v6, v{vT}, 7, v6", f"v_lshl_add_u32 v{vORB}, v2, 9, v6"]
        late += [f"v_xor_b32 v{vORB+n}, {n*32}, v{vORB}" for n in range(1, 4)]
        if self.split:
            A(f"s_lshr_b32 s{sT0}, s{sG}, 1\ns_mul_i32 s{sT0}, s{sT0}, s{sN0+1}\ns_add_u32 s{sT0}, s{sT0}, s{sN0}\ns_and_b32 s{sT1}, s{sJ}, 4\ns_lshl_b32 s{sT1}, s{sT1}, 7\ns_add_u32 s{sN0+2}, s{sT0}, s{sT1}")
        else: A(f"s_lshl_b32 s{sN0+2}, s{sJ}, 7")
        late += ["v_and_b32 v6, 1, v2", "v_lshl_add_u32 v6, v6, 4, v3", "v_lshlrev_b32 v6, 10, v6", f"v_lshl_add_u32 v6, s{sW}, 15, v6",
                 f"v_add_u32 v6, s{sN0+2}, v6", f"v_lshl_add_u32 v6, s{sG}, 5, v6", "v_lshrrev_b32 v4, 1, v2", f"v_lshl_add_u32 v{vOUTA}, v4, 4, v6",
                 f"v_lshlrev_b32 v{vL16}, 4, v0"]
        late += [f"v_mov_b32 v{vONE+i}, 0x3f803f80" for i in range(4)]
        self.late = late
        if self.one: A(f"s_cmp_eq_u32 s{sW}, 3\ns_cbranch_scc1 L_one")

    def q_reads(self, c, st):
        s, dh = st // 2, st % 2
        hi = (c % 4) // 2
        xo = (XSL[c % 4] - XSL[2 * hi]) * SLOT; wo = (WSL[c % 4] - WSL[2 * hi]) * SLOT
        r = [f"ds_read_b128 {ar(64+8*s+8*(c==7 and s==1)+4*q)}, v{vXR+2*hi+s} offset:{xo+2048*q}" for q in range(self.NQ)] if dh == 0 else []
        for d in range(4):
            for a in range(2):
                r.append(f"ds_read_b64_tr_b16 {ar(16*st+4*d+2*a,2)}, v{vWR+8*hi+4*dh+d} offset:{wo+s*8192+a*1024}")
        return r
    def q_mfs(self, st, first=False, last=False):
        s, dh = st // 2, st % 2
        s += last and s
        return [f"{MF} {vr(qacc(4*dh+d,q))}, {ar(16*st+4*d)}, {ar(64+8*s+4*q)}, {'0' if first else vr(qacc(4*dh+d,q))}"
                for d in range(4) for q in range(self.NQ)]
    @staticmethod
    def spread(items, n, start=0):
        g = [[] for _ in range(n)]
        k = n - start
        for i, x in enumerate(items): g[start + i * k // max(len(items), 1)].append(x)
        return g
    def qphase(self):
        A = self.A; NQ = self.NQ; G = 4 * NQ
        late = list(self.late) + [f"v_mov_b32 v{vO+8*db+4*q+i}, 0" for q in range(NQ) for db in range(8) for i in range(4)]
        for c in range(8):
            d = []
            if c <= 4:
                nc = self.next_chunk()
                d = [([self.m0(XSL[(c + 3) % 4])] + nc[:2], self.dma(vXD, sX, sSOA, self.xw, 2 * NQ), f"P{c+3}"),
                     ([self.m0(WSL[(c + 3) % 4])] + nc[2:], self.dma(vWD, sWQ, sSOB, self.xw), f"P{c+3}")]
            for it in self.kvsched.get(c, []): d.append(self.kv_item(it))
            bar = [f"s_waitcnt vmcnt({self.younger(f'P{c}')})", "s_barrier"] + self.stamp(20 + c)
            seq = []
            if self.wopf and c in self.wosteps:
                ws = [w for w in range(4) if self.wosteps[w] == c and (w < 3) == (NQ == 2)]
                ld = f"buffer_load_dword v{vMX1}, v{vMX1}, {sr(sWO)}, 0 offen"
                if len(ws) == (3 if NQ == 2 else 1): seq.append([ld])
                elif ws: seq.append([f"s_bitcmp1_b32 {sum(1 << w for w in ws)}, s{sW}\ns_cbranch_scc0 L_nopf{c}\n{ld}\nL_nopf{c}:"])
            for su, ld, tag in d:
                seq += [su] + [[x] for x in ld]; self.vm += [tag] * len(ld)
            if c == 0:
                self.emit(bar + self.q_reads(0, 0) + self.q_reads(0, 1))
                order = ((0, 2), (1, 3))
            else:
                A("s_waitcnt lgkmcnt(0)")
                order = ((2, 0), (3, 1), (0, 2), (1, 3)) if c < 7 else ((2, 0), (3, 2), (0, 1), (2, 3))
            ng = G * len(order)
            dg = self.spread(seq, ng, 1)
            for k, (sm, srd) in enumerate(order):
                rd = self.q_reads(c, srd)
                first = 1 if (k == 0 and c > 0 and NQ == 2) else 0
                nr = 5 if NQ == 2 else G
                rg = [[]] * first + self.spread(rd, nr) + [[]] * (G - nr - first)
                if k == 0 and c > 0: rg[0] = bar + rg[0]
                gaps = []
                for g in range(G):
                    x = rg[g] + sum(dg[k * G + g], [])
                    if c >= 1 and (len(x) < 2 or NQ == 1):
                        n = 2 - (len(x) > 0) + (NQ == 1 and c <= 3); x = x + late[:n]; late = late[n:]
                    gaps.append(x)
                self.weave(self.q_mfs(sm, c == 0, c == 7 and k >= 2), gaps)
            if c == 4: assert len(late) <= 32 * NQ, len(late)
        assert not late
    def kv_item(self, it):
        t = int(it[1:])
        if self.krot:
            so = sKSO if it[0] == "K" else sVSO
            return ([self.m0(t + 3 * (it[0] == "V")), f"s_add_u32 s{so}, s{sGB}, {t*SLOT}", f"s_and_b32 s{so}, s{so}, 0x3ffff"], self.dma_k() if it[0] == "K" else self.dma_v(), it)
        if it[0] == "K": return ([f"s_add_u32 m0, s{sW4B}, {t*SLOT}", f"s_add_u32 s{sKSO}, s{sGB}, {t*SLOT}"], self.dma_k(), it)
        return ([f"s_add_u32 m0, s{sW4B}, {(3+t)*SLOT}", f"s_add_u32 s{sVSO}, s{sGB}, {t*SLOT}"], self.dma_v(), it)
    def bfirst(self):
        A = self.A
        m = self.mark()
        A(f"""
        L_bfirst:
        s_lshl_b32 s{sKSO}, s{sD}, 2
        s_add_u32 s{sKSO}, s{sKSO}, s{sW}
        s_mul_i32 s{sKSO}, s{sKSO}, 7168
        v_min_u32 v{vT}, 55, v0
        v_lshlrev_b32 v{vT}, 7, v{vT}
        buffer_load_dword v{vPOLL}, v{vT}, {sr(sX)}, s{sKSO} offen
        s_lshl_b32 s{sVSO}, s{sB}, 5
        s_add_u32 s{sVSO}, s{sVSO}, s{sH}
        s_lshl_b32 s{sVSO}, s{sVSO}, 18
        s_add_u32 s{sK}, s6, s{sVSO}
        s_addc_u32 s{sK+1}, s7, 0
        s_mov_b32 s{sK+2}, 0x40000
        s_mov_b32 s{sK+3}, 0x20000
        s_add_u32 s{sV}, s8, s{sVSO}
        s_addc_u32 s{sV+1}, s9, 0
        s_mov_b32 s{sV+2}, 0x40000
        s_mov_b32 s{sV+3}, 0x20000
        s_mov_b32 s{sKSO}, 0
        s_mov_b32 s{sVSO}, 0
        {self.m0(0)}
        """)
        for p, x in enumerate(self.dma_k()):
            A(f"v_add_u32 v{vT}, {4*p}, v2\nv_xor_b32 v{vT}, v{vT}, v3\nv_lshlrev_b32 v{vT}, 4, v{vT}\nv_lshl_add_u32 v{vKD+p}, v1, 8, v{vT}\n{x}")
        A(f"{self.m0(3)}\nv_lshl_add_u32 v{vVD}, v1, 8, v4\nv_xor_b32 v{vVD+1}, 128, v{vVD}\nv_mov_b32 v{vVD+2}, v{vVD}\nv_mov_b32 v{vVD+3}, v{vVD+1}")
        self.emit(self.dma_v())
        nk = sum(c == "k" for c in self.bpf)
        if nk: A(f"v_and_b32 v{vT}, 31, v0\nv_lshlrev_b32 v{vT}, 7, v{vT}")
        for t in range(1, nk + 1):
            A(f"""
            s_add_u32 s{sKSO}, s{sW4K}, {t*SLOT}
            buffer_load_dword v{vPOLL}, v{vT}, {sr(sK)}, s{sKSO} offen
            buffer_load_dword v{vPOLL+1}, v{vT}, {sr(sV)}, s{sKSO} offen
            """)
        if "o" in self.bpf:
            A(f"""
            s_lshl_b32 s{sKSO}, s{sG}, 20
            s_add_u32 s{sWO}, s12, s{sKSO}
            s_addc_u32 s{sWO+1}, s13, 0
            s_mov_b32 s{sWO+2}, 0x100000
            s_mov_b32 s{sWO+3}, 0x20000
            s_lshl_b32 s{sKSO}, s{sD}, 2
            s_lshr_b32 s{sVSO}, s{sB}, 1
            s_add_u32 s{sKSO}, s{sKSO}, s{sVSO}
            s_lshl_b32 s{sKSO}, s{sKSO}, 2
            s_add_u32 s{sKSO}, s{sKSO}, s{sW}
            s_lshl_b32 s{sKSO}, s{sKSO}, 14
            s_lshr_b32 s{sVSO}, s{sJ}, 2
            s_lshl_b32 s{sVSO}, s{sVSO}, 9
            s_add_u32 s{sKSO}, s{sKSO}, s{sVSO}
            v_lshrrev_b32 v{vT}, 2, v0
            v_and_b32 v{vT+1}, 3, v0
            v_lshlrev_b32 v{vT+1}, 7, v{vT+1}
            v_lshl_add_u32 v{vT}, v{vT}, 10, v{vT+1}
            buffer_load_dword v{vPOLL}, v{vT}, {sr(sWO)}, s{sKSO} offen
            """)
        A(f"{self.m0(XSL[0])}\ns_branch L_pairs")
        self.seg("bf", m)

    def kreads(self, slot, half):
        return [f"ds_read_b128 {ar(aK+16*u+4*s)}, v{vKR+s} offset:{slot*SLOT+8192*half+4096*u}" for s in range(4) for u in range(2)]
    def vreads(self, slot, half):
        return [f"ds_read_b64_tr_b16 {ar(aV+4*db+2*a,2)}, v{vVR+db} offset:{slot*SLOT+8192*half+4096*a}" for db in range(8) for a in range(2)]
    def qks(self, S, zero=False):
        return [f"{MF} {vr(S+8*u+4*q)}, {ar(aK+16*u+4*s)}, {vr(vQ+16*q+4*s)}, " + (vr(S + 8 * u + 4 * q) if s else "0" if zero else vr(vCI + 4 * q))
                for s in range(4) for u in range(2) for q in range(self.NQ)]
    def pvs(self):
        r = []
        for q in range(self.NQ):
            r.append(f"{MF} {vr(vL+4*q)}, {vr(vONE)}, {vr(vP+4*q)}, {vr(vL+4*q)}")
            r += [f"{MF} {vr(vO+8*db+4*q)}, {ar(aV+4*db)}, {vr(vP+4*q)}, {vr(vO+8*db+4*q)}" for db in range(8)]
        return r
    def sregs(self, S, q): return [S + 8 * u + 4 * q + i for u in range(2) for i in range(4)]
    def max8(self, S, q, d):
        r = self.sregs(S, q)
        return [f"v_max3_f32 v{d}, v{r[0]}, v{r[1]}, v{r[2]}", f"v_max3_f32 v{d}, v{d}, v{r[3]}, v{r[4]}",
                f"v_max3_f32 v{d}, v{d}, v{r[5]}, v{r[6]}", f"v_max_f32 v{d}, v{d}, v{r[7]}"]
    def check(self, S):
        a = self.max8(S, 0, vMX0)
        if self.NQ == 2:
            b = self.max8(S, 1, vMX1)
            a = [a[0], b[0], a[1], b[1], a[2], b[2], b[3], f"v_max3_f32 v{vMX0}, v{vMX0}, v{self.sregs(S,0)[7]}, v{vMX1}"]
        return a + [f"v_cmp_lt_f32 vcc, {f2u(self.T):#x}, v{vMX0}"]
    def softmax(self, S, q):
        r = self.sregs(S, q)
        e = [f"v_exp_f32 v{x}, v{x}" for x in r]
        c = [f"v_cvt_pk_bf16_f32 v{vP+4*q+k}, v{r[2*k]}, v{r[2*k+1]}" for k in range(4)]
        return e, c
    def sec_P(self, Sdone, Schk, k, v, dma, tag, bar=True):
        A = self.A; NQ = self.NQ
        A("s_waitcnt lgkmcnt(0)")
        b = [f"s_waitcnt vmcnt({self.loopw if tag < self.loopn else 12})", "s_barrier"] if bar else []
        if bar and self.lim:
            b = [f"s_cmp_ge_u32 s{sT}, s{sLIM}\ns_cbranch_scc1 L_lim{tag}_{NQ}\ns_waitcnt vmcnt({self.limw})\nL_lim{tag}_{NQ}:"] + b
        k = [[x] for x in k] if k else [[]] * 8
        d = [[x] for x in dma] if dma else [[]] * 5
        x = self.check(Schk)
        if NQ == 2:
            f, c = self.softmax(Sdone, 1)
            g = [b + k[0] + c[1:2], d[0] + f[4:5], k[1] + k[2], f[5:6], k[3] + c[2:3], f[6:7], f[7:8], k[4] + c[3:4],
                 k[5] + x[0:1], k[6] + x[1:2], k[7] + x[2:3], v[0:1] + x[3:4], v[1:2] + d[1] + x[4:5], v[2:3] + x[5:6],
                 v[3:4] + x[6:7], v[4:5] + x[7:8], v[5:6] + x[8:9], v[6:8]]
        else:
            g = [b + k[0], k[1] + d[0] + v[0:2], k[2] + v[2:4], k[3] + d[1] + v[4:6], k[4] + v[6:8] + x[0:1], k[5] + x[1:2],
                 k[6] + x[2:3], k[7] + x[3:4], x[4:5]]
        self.weave(self.pvs(), g)
        A(f"s_cbranch_vccnz L_rs_{tag}_{NQ}\nL_rsb_{tag}_{NQ}:")

    def sec_Q(self, Snew, S, v, dma, tail=(), first=False):
        NQ = self.NQ
        e, c = self.softmax(S, 0)
        d = [[x] for x in dma] if dma else [[]] * 3
        t = list(tail) + [[]] * 2
        v = v[-8:]
        if NQ == 2:
            f, cc = self.softmax(S, 1)
            g = [e[0:1], e[1:2], v[0:2], e[2:3], e[3:4], v[2:4] + c[0:1], e[4:5], e[5:6], v[4:6] + c[1:2], e[6:7], e[7:8],
                 v[6:8] + c[2:3], f[0:1] + c[3:4], d[0] + f[1:2], d[1] + t[0] + f[2:3], d[2] + t[1] + f[3:4] + cc[0:1]]
            if self.dpos == 1:
                g[0] = d[0] + g[0]; g[6] = d[1] + g[6]; g[13] = d[2] + f[1:2]; g[14] = f[2:3]
                g[15] = t[0] + t[1] + f[3:4] + cc[0:1]
        else:
            g = [v[0:2] + e[0:2], v[2:4] + e[2:3] + c[0:1], v[4:6] + e[3:5], v[6:8] + c[1:2] + e[5:6], d[0] + e[6:7] + c[2:3],
                 d[1] + e[7:8], d[2] + t[0] + c[3:4], t[1] + ["s_nop 0"]]
        self.weave(self.qks(Snew), g)

    def allmax(self, regs):
        r = []
        for op in ("v_permlane32_swap_b32", "v_permlane16_swap_b32"):
            r += [f"v_mov_b32 v{vT+i}, v{x}" for i, x in enumerate(regs)] + ["s_nop 1"]
            r += [f"{op} v{x}, v{vT+i}" for i, x in enumerate(regs)]
            r += [f"v_max_f32 v{x}, v{x}, v{vT+i}" for i, x in enumerate(regs)]
        return r
    def rescale(self):
        A = self.A; NQ = self.NQ
        for tag in range(13): A(f"L_rs_{tag}_{NQ}:\ns_mov_b32 s{sT0}, {tag}\ns_branch L_rs{'BA'[tag%2]}_{NQ}")
        for S, n, tags in ((vSA, "A", list(range(1, 13, 2))), (vSB, "B", list(range(0, 13, 2)))):
            m = self.mark()
            A(f"L_rs{n}_{NQ}:")
            mx = [vMX0, vMX1][:NQ]
            for q in range(NQ): self.emit(self.max8(S, q, mx[q]))
            self.emit(self.allmax(mx))
            for q in range(NQ): A(f"v_max_f32 v{mx[q]}, 0, v{mx[q]}\nv_sub_f32 v{vT+q}, 0, v{mx[q]}\nv_exp_f32 v{vT+q}, v{vT+q}")
            for q in range(NQ):
                for x in self.sregs(S, q) + [vCI + 4 * q + i for i in range(4)]: A(f"v_sub_f32 v{x}, v{x}, v{mx[q]}")
            for q in range(NQ):
                for x in [vL + 4 * q + i for i in range(4)] + [vO + 8 * db + 4 * q + i for db in range(8) for i in range(4)]:
                    A(f"v_mul_f32 v{x}, v{x}, v{vT+q}")
            self.seg(f"rs{n}{NQ}", m)
            for t in tags[:-1]: A(f"s_cmp_eq_u32 s{sT0}, {t}\ns_cbranch_scc1 L_rsb_{t}_{NQ}")
            A(f"s_nop 0\ns_branch L_rsb_{tags[-1]}_{NQ}")

    def attn_prologue(self):
        A = self.A; NQ = self.NQ; per = 2 * NQ
        src = lambda s, q: [qacc(2 * s + h, q) + i for h in range(2) for i in range(4)]
        mul = lambda s: [f"v_mul_f32 v{x}, s{sSC}, v{x}" for q in range(NQ) for x in src(s, q)]
        def pack(s0):
            r = [f"v_cvt_pk_bf16_f32 v{vQ+16*q+4*s+k}, v{src(s,q)[2*k]}, v{src(s,q)[2*k+1]}" for s in (s0, s0 + 1) for q in range(NQ) for k in range(4)]
            for op in ("v_permlane32_swap_b32", "v_permlane16_swap_b32"):
                r += ["s_nop 0"] + [f"{op} v{vQ+16*q+4*s+k}, v{vQ+16*q+4*s+2+k}" for s in (s0, s0 + 1) for q in range(NQ) for k in range(2)]
            return r
        n = 8 * NQ; k0 = self.kreads(0, 0)
        g = self.spread(mul(0) + mul(1), n, 2 if NQ == 2 else 3)
        g[0] = [f"s_waitcnt vmcnt({self.younger('K0')})", "s_barrier"] + self.stamp(2)
        for i, x in enumerate(k0): g[1 + i * (n - 1) // 8].insert(0, x)
        self.weave(self.q_mfs(1, last=True) + self.q_mfs(3, last=True), g)
        su, ld = [], []
        for it in self.kvsched.get(8, []):
            su, ld, tag = self.kv_item(it); self.vm += [tag] * 4
        if self.stag is not None:
            self.emit([f"s_cmp_lg_u32 s{sGB}, 0", f"s_cbranch_scc1 L_nok_{NQ}"] + su + ld + [f"L_nok_{NQ}:"]); su, ld = [], []
        p = self.spread(pack(0), 5)
        self.emit(su + sum([a + b for a, b in zip(p, [[x] for x in ld] + [[]] * 5)], []) + ["s_nop 0"])
        qk = self.qks(vSA, True); k1 = self.kreads(0, 1)
        for half, fill in ((0, mul(2) + mul(3) + pack(2) + ["s_nop 0"]), (1, [f"v_mov_b32 v{vL+i}, 0" for i in range(4 * NQ)])):
            if half and self.dump == "q": self.dump_regs(vQ)
            g = self.spread(fill, 2 * per)
            for i in range(4): g[i * NQ + NQ - 1].insert(0, k1[4 * half + i])
            self.weave(qk[2 * per * half:2 * per * (half + 1)], g)
        A(f"s_waitcnt vmcnt({self.younger('V0')})\ns_barrier")
        su, ld = [], []
        for it in self.kvsched.get(9, []):
            su, ld, tag = self.kv_item(it); self.vm += [tag] * 4
        if self.stag is not None: self.emit(self.vreads(0, 0)[:8] + [f"s_cmp_lg_u32 s{sGB}, 0", f"s_cbranch_scc1 L_nov_{NQ}"] + su + ld + [f"L_nov_{NQ}:"])
        else: self.emit(su + self.vreads(0, 0)[:8] + ld)
        mx = [vMX0, vMX1][:NQ]
        for q in range(NQ): self.emit(self.max8(vSA, q, mx[q]))
        self.emit(self.allmax(mx))
        for q in range(NQ):
            for i in range(4): A(f"v_sub_f32 v{vCI+4*q+i}, 0, v{mx[q]}")
        for q in range(NQ):
            for x in self.sregs(vSA, q): A(f"v_sub_f32 v{x}, v{x}, v{mx[q]}")
        self.sec_Q(vSB, vSA, self.vreads(0, 0), None)
        if self.krot: A(f"s_mov_b32 s{sT}, 0\ns_add_u32 s{sKSO}, s{sGB}, {3*SLOT}\ns_and_b32 s{sKSO}, s{sKSO}, 0x3ffff\ns_mov_b32 s{sVSO}, s{sKSO}")
        else: A(f"s_mov_b32 s{sT}, 0\ns_mov_b32 s{sKSO}, {3*SLOT}\ns_mov_b32 s{sVSO}, {3*SLOT}")
        assert self.younger("K1") == 12
        self.emit(self.stamp(3))

    def tile(self, r, tag, da, db, ta=(), tb=()):
        s0, s1 = r, (r + 1) % 3
        self.sec_P(vSA, vSB, self.kreads(s1, 0), self.vreads(s0, 1), [self.m0(s0)] + da[:1], tag)
        self.sec_Q(vSA, vSB, self.vreads(s0, 1), da[1:], [[], list(ta)])
        self.sec_P(vSB, vSA, self.kreads(s1, 1), self.vreads(s1, 0), [self.m0(3 + s0)] + db[:1], tag + 1)
        self.sec_Q(vSB, vSA, self.vreads(s1, 0), db[1:], [[], list(tb)])
    def attn_loop(self):
        A = self.A; NQ = self.NQ
        A(f"L_a_{NQ}:")
        for r in range(3):
            self.tile(r, 2 * r, self.dma_k(), self.dma_v(), [f"s_add_u32 s{sKSO}, s{sKSO}, {SLOT}"] + ([f"s_and_b32 s{sKSO}, s{sKSO}, 0x3ffff"] if self.krot else []),
                      [f"s_mov_b32 s{sVSO}, s{sKSO}"] + ([f"s_add_u32 s{sT}, s{sT}, 1", f"s_cmp_lt_u32 s{sT}, 4"] if r == 2 and self.stamps != "loop" else []))
            if r == 0: A(f"s_call_b64 s[{sRET}:{sRET+1}], L_x")
        if self.stamps == "loop":
            A(f"s_add_u32 s{sT}, s{sT}, 1")
            for k in range(1, 5):
                A(f"s_cmp_eq_u32 s{sT}, {k}\ns_cbranch_scc0 L_ls{k}_{NQ}"); self.emit(self.stamp(10 + k)); A(f"L_ls{k}_{NQ}:")
            A(f"s_cmp_lt_u32 s{sT}, 4")
        A(f"s_cbranch_scc1 L_a_{NQ}\nL_last_{NQ}:")
        so = lambda c: [f"s_mov_b32 s{sKSO}, {c << 17}"]
        wo = lambda: self.dma(vOD, sWO, sKSO, self.wo)
        self.tile(0, 6, self.dma_k(), self.dma_v(), ["v_mov_b32 v2, 0"], [f"buffer_load_dwordx2 {vr(vTAG,2)}, v2, {sr(sDBG)}, 0 offen sc1"] + so(4))
        self.tile(1, 8, wo(), wo(), so(5), so(6))
        self.tile(2, 10, wo(), wo(), so(7), [f"v_and_b32 v1, v{vTAG}, v{vTAG+1}", "v_and_b32 v1, 1, v1"])
        A(f"v_cmp_eq_u32 vcc, 0, v1\ns_cbranch_vccnz L_notag_{NQ}\nL_tag_{NQ}:")

    def loop_extras(self):
        A = self.A
        m = self.mark()
        A(f"""
        L_x:
        s_lshl_b32 s{sT1}, s{sT}, 17
        s_lshl_b32 s{sT0}, s{sT}, 14
        s_add_u32 s{sT0}, s{sT0}, {6*SLOT}
        s_add_u32 m0, s{sT0}, s{sW4K}
        s_or_b32 s{sT0}, s{sT}, s{sAT}
        """)
        self.emit(self.dma(vOD, sWO, sT1, self.wo))
        A(f"""
        s_cbranch_scc0 L_x_tag
        s_cmp_eq_u32 s{sT}, 3
        s_cbranch_scc1 L_x_pf
        s_setpc_b64 s[{sRET}:{sRET+1}]
        L_x_tag:
        s_mov_b32 s{sT0}, 0x9e3779b9
        v_add_co_u32 v{vTAG}, vcc, 0x7f4a7c15, v{vTAG}
        v_mov_b32 v1, s{sT0}
        v_mov_b32 v2, 0
        v_addc_co_u32 v{vTAG+1}, vcc, v1, v{vTAG+1}, vcc
        v_or_b32 v{vTAG}, 1, v{vTAG}
        v_or_b32 v{vTAG+1}, 1, v{vTAG+1}
        s_mov_b64 exec, 1
        buffer_store_dwordx2 {vr(vTAG,2)}, v2, {sr(sDBG)}, 0 offen sc1
        buffer_store_dwordx2 {vr(vTAG,2)}, v{vCNT}, {sr(sWS)}, 0 offen sc1
        s_mov_b64 exec, -1
        s_setpc_b64 s[{sRET}:{sRET+1}]
        L_x_pf:
        """)
        if self.pf:
            A(f"""
            s_getpc_b64 s[{sT0}:{sT1}]
            L_pcref2:
            v_lshlrev_b32 v1, 3, v{vL16}
            v_lshl_add_u32 v1, s{sW}, 13, v1
            v_min_u32 v1, L_tail_end - L_pcref2 - 4, v1
            global_load_dword v{vPOLL}, v1, s[{sT0}:{sT1}]
            """)
        if self.tlb:
            A(f"""
            v_mov_b32 v1, s{sOB}
            v_writelane_b32 v1, s{sPBs}, 1
            v_mov_b32 v2, 0
            v_cmp_gt_u32 vcc, 2, v0
            s_nop 1
            v_cndmask_b32 v1, v{vF1P}, v1, vcc
            s_mov_b64 exec, 7
            buffer_load_dword v{vPOLL+1}, v1, {sr(sWS)}, 0 offen nt
            buffer_load_dword v{vPOLL+1}, v2, {sr(sOUT)}, 0 offen nt
            s_mov_b64 exec, -1
            """)
        A(f"s_setpc_b64 s[{sRET}:{sRET+1}]")
        self.seg("x", m)
    def notag(self):
        self.A(f"L_notag_{self.NQ}:\nv_mov_b32 v2, 0")
        self.spin(f"L_cnt_{self.NQ}", 2, sDBG, f"v_and_b32 v1, v{vTAG}, v{vTAG+1}\nv_and_b32 v1, 1, v1\nv_cmp_eq_u32 vcc, 0, v1", vTAG)
        self.A(f"s_branch L_tag_{self.NQ}")

    def dump_regs(self, base):
        A = self.A
        A(f"s_lshl_b32 s{sT0}, s{sJ}, 15\ns_add_u32 s{sT0}, s{sT0}, s{sOB}\ns_add_u32 s{sT1}, s{sT0}, 4096\ns_nop 1")
        for i in range(4 * self.NQ):
            A(f"buffer_store_dwordx4 {vr(base+4*i)}, v{vL16}, {sr(sWS)}, s{sT0 if i < 4 else sT1} offen offset:{1024*(i%4)}")
        A("s_waitcnt vmcnt(0)\ns_endpgm")

    def spin(self, label, vaddr, srd, cmp, dst=vPOLL):
        self.A(f"""
        s_mov_b32 s{sSPIN}, 0
        {label}:
        buffer_load_dwordx2 {vr(dst,2)}, v{vaddr}, {sr(srd)}, 0 offen {self.fld}
        s_add_u32 s{sSPIN}, s{sSPIN}, 1
        s_cmp_gt_u32 s{sSPIN}, {self.spinmax}
        s_cbranch_scc1 {label}_out
        s_waitcnt vmcnt(0)
        {cmp}
        s_cbranch_vccz {label}_out
        {f"s_sleep {self.sleep}" if self.sleep else ""}
        s_branch {label}
        {label}_out:
        """)

    def select(self, p, block):
        r = [f"s_and_b32 s{sT0}, s{sRDY}, s{sPEND}"]
        if block:
            r[0] += f"\ns_cbranch_scc0 L_sel{p}_{self.NQ}\nL_sel{p}_{self.NQ}_go:"
            self.polls.append(f"{p}_{self.NQ}")
        r += [f"s_ff1_i32_b32 s{sT0}, s{sT0}", f"s_bitset0_b32 s{sPEND}, s{sT0}",
              f"s_add_u32 s{sT0}, s{sT0}, s{sJ}", f"s_and_b32 s{sT0}, s{sT0}, 7", f"s_lshl_b32 s{sT1}, s{sT0}, 15",
              f"s_add_u32 s{sO0}, s{sT1}, s{sOB}", f"s_add_u32 s{sO0+1}, s{sO0}, 4096",
              f"s_lshl_b32 s{sT1}, s{sT0}, 2", f"s_lshr_b32 s{sT1}, 0x52419876, s{sT1}",
              f"s_and_b32 s{sT1}, s{sT1}, 15", f"s_lshl_b32 s{sSL+p%3}, s{sT1}, 14"]
        return r
    def poll_blocks(self):
        for p in self.polls:
            self.A(f"""
            L_sel{p}:
            s_mov_b32 s{sSPIN}, 0
            L_sel{p}_l:
            buffer_load_dwordx2 {vr(vPOLL,2)}, v{vF1P}, {sr(sWS)}, 0 offen {self.fld}
            s_add_u32 s{sSPIN}, s{sSPIN}, 1
            s_waitcnt vmcnt(0)
            v_cmp_eq_u64 vcc, {vr(vTAG,2)}, {vr(vPOLL,2)}
            s_cmp_gt_u32 s{sSPIN}, {self.spinmax}
            s_cselect_b32 s{sRDY}, -1, vcc_lo
            s_and_b32 s{sT0}, s{sRDY}, s{sPEND}
            s_cbranch_scc1 L_sel{p}_go
            {f"s_sleep {self.sleep1}" if self.sleep1 else ""}
            s_branch L_sel{p}_l
            """)

    def woreads(self, n):
        s, hb, st = (n % 8) // 2, (n % 2) ^ (n >= 62), n % 4
        return [f"ds_read_b64_tr_b16 {ar(224+8*st+4*k+2*a,2)}, v{vOR+2*hb+k} offset:{s*4096+a*2048}" for k in range(2) for a in range(2)]
    def oload(self, i, k):
        s, q = k // self.NQ, k % self.NQ
        return f"buffer_load_dwordx4 {ar(32*(i-1)+16*q+4*s)}, v{vL16}, {sr(sWS)}, s{sO0+q} offen offset:{1024*s} sc1"
    def ostep(self, n, vm=None, extra=(), reads=True, adv=True):
        NQ = self.NQ; i, s, hb = n // 8, (n % 8) // 2, (n % 2) ^ (n >= 62)
        lg = 4 if n < 63 and (reads or n % 8 == 6) else 0
        self.A("s_waitcnt " + (f"vmcnt({vm}) " if vm is not None else "") + f"lgkmcnt({lg})")
        rd = self.woreads(n + 2) if n + 2 < 64 and reads else []
        mf = []
        for k in ((0, 1) if n < 63 else (1, 0)):
            for q in range(NQ):
                y = vr(vY + 8 * (2 * hb + k) + 4 * q)
                B = vr(vQ + 16 * q + 4 * s) if i == 0 else ar(32 * (i - 1) + 16 * q + 4 * s)
                mf.append(f"{MF} {y}, {ar(224+8*(n%4)+4*k)}, {B}, {'0' if n < 2 else y}")
        x = self.spread(list(extra), 2)
        g = [rd[0:2], x[0], rd[2:4], x[1]] if NQ == 2 else [rd[0:2] + x[0], rd[2:4] + x[1]]
        if adv and n % 8 in (4, 5) and n // 8 < 7 and reads:
            g[-1] += [f"v_add_u32 v{vOR+2*hb+k}, s{sSL+(i+1)%3}, v{vORB+2*hb+k}" for k in range(2)]
        self.weave(mf, g)
    @property
    def PUBLISH1(self): return [f"s_mov_b64 exec, {0xfe if self.flags[0] == 'o' else 1}", f"buffer_store_dwordx2 {vr(vTAG,2)}, v{vFOWN}, {sr(sWS)}, 0 offen {self.fst}", "s_mov_b64 exec, -1"]

    def tail(self):
        A = self.A; NQ = self.NQ; NL = 4 * NQ
        poll = f"buffer_load_dwordx2 {vr(vPOLL,2)}, v{vF1P}, {sr(sWS)}, 0 offen {self.fld}"
        self.emit(self.stamp(4))
        p0 = ""
        if self.pollpos == 0: A(poll)
        self.sec_P(vSA, vSB, None, self.vreads(0, 1), None, 12, bar=False)
        if self.pollpos == 1: A(poll)
        if self.pollpos == 2: p0 = poll
        e, c = self.softmax(vSB, 0)
        self.emit(self.vreads(0, 1)[8:] + e[0:3] + c[0:1] + e[3:5] + c[1:2] + e[5:7] + c[2:3] + e[7:8])
        self.emit([f"s_lshl_b32 s{sT0}, s{sJ}, 15"] + c[3:4] + [f"s_add_u32 s{sT0}, s{sT0}, s{sOB}", f"s_add_u32 s{sT1}, s{sT0}, 4096"])
        def norm(q, packed):
            r = []
            for s in range(4):
                src = [vO + 8 * (2 * s + h) + 4 * q + i for h in range(2) for i in range(4)]
                for k in range(4):
                    if 4 * s + k >= packed: r.append(f"v_pk_mul_f32 {vr(src[2*k],2)}, {vr(src[2*k],2)}, {vr(vT+2*q,2)}")
                    else: r += [f"v_mul_f32 v{x}, v{x}, v{vT+2*q}" for x in src[2 * k:2 * k + 2]]
                    r.append(f"v_cvt_pk_bf16_f32 v{vQ+16*q+4*s+k}, v{src[2*k]}, v{src[2*k+1]}")
                r.append(f"buffer_store_dwordx4 {vr(vQ+16*q+4*s)}, v{vL16}, {sr(sWS)}, s{sT0+q} offen offset:{1024*s} sc1")
            return r
        oa = [f"v_add_u32 v{vOR+k}, s{sSL}, v{vORB+k}" for k in range(4)]
        if NQ == 2:
            f, d = self.softmax(vSB, 1)
            n0 = norm(0, 6)
            g = self.spread(f[0:3] + d[0:1] + f[3:5] + d[1:2] + f[5:7] + d[2:3] + f[7:8], 7) + [d[3:4] + [f"v_rcp_f32 v{vT}, v{vL}"], [p0, f"v_mov_b32 v{vT+1}, v{vT}"]]
            g += [[]] + self.spread(n0[:19], 8)
            self.weave(self.pvs(), g)
            self.emit([f"v_rcp_f32 v{vT+2}, v{vL+4}"] + oa + [f"v_mov_b32 v{vT+3}, v{vT+2}"] + n0[19:] + norm(1, 0))
        else:
            self.weave(self.pvs(), [[], [], [], [], [p0], oa[:2], oa[2:], ["s_nop 0"], [f"v_rcp_f32 v{vT}, v{vL}", "s_nop 3"]])
            self.emit([f"v_mov_b32 v{vT+1}, v{vT}"] + norm(0, 0))
        self.emit(self.stamp(5))
        A(f"""
        s_waitcnt vmcnt({NL})
        v_cmp_eq_u64 vcc, {vr(vTAG,2)}, {vr(vPOLL,2)}
        s_mov_b32 s{sPEND}, 0xfe
        s_barrier
        s_and_b32 s{sRDY}, vcc_lo, 0xfe
        """)
        self.emit(self.woreads(0) + self.woreads(1))
        if self.dump == "o": A("s_waitcnt vmcnt(0)\ns_endpgm")
        A(f"s_bcnt1_i32_b32 s{sT0}, s{sRDY}\ns_cmp_ge_u32 s{sT0}, {self.nfast}\ns_cbranch_scc0 L_slow_{NQ}\nL_fast_{NQ}:")
        look = [f"v_cmp_eq_u64 vcc, {vr(vTAG,2)}, {vr(vPOLL,2)}", "s_nop 0", f"s_or_b32 s{sRDY}, s{sRDY}, vcc_lo"]
        if self.apoll: A(poll)
        for p in (1, 2):
            self.emit(self.select(p, False))
            for n in range(4): self.ostep(4 * (p - 1) + n, extra=[self.oload(p, NQ * n + q) for q in range(NQ)])
        A(f"s_waitcnt vmcnt({2*NL})")
        self.emit(self.PUBLISH1 + (look if self.apoll else []))
        A(f"L_common_{NQ}:")
        self.emit(self.stamp(6))
        prep = [f"s_lshl_b32 s{sD}, s{sG}, 11", f"s_add_u32 s{sD}, s{sD}, s{sPBs}"]
        for v in (1, 2, 3): prep += [f"s_xor_b32 s{sT0}, s{sG}, {v}", f"s_lshl_b32 s{sT1}, s{sT0}, 13", f"s_add_u32 s{sN0+v-1}, s{sT1}, s{sD}", f"s_lshl_b32 s{sRO[v-1]}, s{sT0}, 11"]
        prep += [f"s_lshl_b32 s{sD}, s{sG}, 13", f"s_add_u32 s{sD}, s{sD}, s{sPBs}"] + [f"s_add_u32 s{x}, s{x}, s{sD}" for x in sRO]
        prep += [f"v_mov_b32 v{vGS+8*v+4*q+1+2*k}, v{vTAG+k}" for v in range(3) for q in range(NQ) for k in range(2)]
        if self.prepoll: prep += [f"v_mov_b32 v{vF2P}, s{sRO[0]}", f"v_writelane_b32 v{vF2P}, s{sRO[1]}, 1", f"v_writelane_b32 v{vF2P}, s{sRO[2]}, 2",
                 f"v_add_u32 v{vF2P}, {1024*(NQ-1)+self.probe}, v{vF2P}"]
        prep = self.spread(prep, 8)
        vm = [(1, k) for k in range(NL)] + [(2, k) for k in range(NL)]
        for i in range(1, 8):
            sel = self.select(i + 2, True) if i < 6 else []
            ld = self.spread([(i + 2, k) for k in range(NL)] if i < 6 else [], 8, 2)
            for h in range(8):
                need = [(i, NQ * (h // 2) + NQ - 1)] if h % 2 == 0 else []
                ex = [self.oload(*x) for x in ld[h]]
                if h == 0:
                    ex = sel[:6]
                    if 2 <= i < 6 and self.apoll: need.append(("poll", i - 1)); ex = ["\n".join(look + sel[:1])] + sel[1:6]
                if h == 1:
                    ex = sel[6:]
                    if i < 5 and self.apoll: ex = ex + [poll]; ld[1] = [("poll", i)]
                if i == 6 and self.gran: ex = ex + prep[h]
                w = min(len(vm) - 1 - vm.index(x) for x in need) if need else None
                self.ostep(8 * i + h, w, extra=ex)
                vm += ld[h]
        self.emit(self.stamp(7))
        if self.gran: self.exchange_tagged()
        else: self.exchange_flagged()
        if self.eps:
            for i in range(4 * NQ): A(f"v_mul_f32 v{vY+i}, {f2u(1+self.eps):#x}, v{vY+i}")
        for i in range(2 * NQ): A(f"v_cvt_pk_bf16_f32 v{vP+i}, v{vY+2*i}, v{vY+2*i+1}")
        A(f"""
        s_nop 1
        v_permlane16_swap_b32 v{vP}, v{vP+2}
        v_permlane16_swap_b32 v{vP+1}, v{vP+3}
        buffer_store_dwordx4 {vr(vP)}, v{vOUTA}, {sr(sOUT)}, 0 offen
        """)
        if self.stamps and NQ == 2:
            A("s_waitcnt vmcnt(0)")
            self.emit(self.stamp(10))
            A(f"""
            s_waitcnt lgkmcnt(0)
            s_cmp_lg_u32 s{sW}, 0
            s_cbranch_scc1 L_end
            s_add_u32 s{sX}, s18, {STAMP_OFF}
            s_addc_u32 s{sX+1}, s19, 0
            s_mov_b32 s{sX+2}, 0x100000
            s_lshl_b32 s{sT0}, s2, 8
            v_mov_b32 v4, s{sT0}
            s_mov_b64 exec, 1
            """)
            if self.stamps == "dbg":
                A(f"s_cmp_lg_u32 s2, 37\ns_cbranch_scc1 L_end\nv_mov_b32 v5, 0")
                for i in range(self.nst):
                    A(f"s_sub_u32 s{sT0}, s{STAMP0+2*i}, s{STAMP0}\nv_mov_b32 v2, s{sT0}\nbuffer_store_dword v2, v5, {sr(sDBG)}, 0 offen offset:{8+4*i}\ns_nop 1")
            for i in range(self.nst):
                A(f"v_mov_b32 v2, s{STAMP0+2*i}\nv_mov_b32 v3, s{STAMP0+2*i+1}\nbuffer_store_dwordx2 v[2:3], v4, {sr(sX)}, 0 offen offset:{8*i}\ns_nop 1")
        A("L_end:\ns_endpgm" if NQ == 2 else "s_endpgm")
    def exchange_flagged(self):
        A = self.A; NQ = self.NQ
        A(f"s_lshl_b32 s{sD}, s{sG}, 11\ns_add_u32 s{sD}, s{sD}, s{sPBs}")
        for v in (1, 2, 3):
            A(f"s_xor_b32 s{sT0}, s{sG}, {v}\ns_lshl_b32 s{sT0}, s{sT0}, 13\ns_add_u32 s{sN0+v-1}, s{sT0}, s{sD}")
        for v in (1, 2, 3):
            for q in range(NQ):
                A(f"buffer_store_dwordx4 {vr(vY+8*v+4*q)}, v{vL16}, {sr(sWS)}, s{sN0+v-1} offen offset:{1024*q} sc1")
        A(f"s_lshl_b32 s{sD}, s{sG}, 13\ns_add_u32 s{sD}, s{sD}, s{sPBs}")
        for v in (1, 2, 3):
            A(f"s_xor_b32 s{sT0}, s{sG}, {v}\ns_lshl_b32 s{sT0}, s{sT0}, 11\ns_add_u32 s{sN0+v-1}, s{sT0}, s{sD}")
        A(f"""
        s_waitcnt vmcnt(0)
        s_mov_b64 exec, {0xe if self.flags[1] == 'o' else 2}
        buffer_store_dwordx2 {vr(vTAG,2)}, v{vF2S}, {sr(sWS)}, 0 offen {self.fst}
        s_mov_b64 exec, -1
        """)
        self.emit(self.stamp(8))
        self.spin(f"L_p2_{NQ}", vF2P, sWS, f"v_cmp_ne_u64 vcc, {vr(vTAG,2)}, {vr(vPOLL,2)}")
        self.emit(self.stamp(9))
        for v in (1, 2, 3):
            for q in range(NQ):
                A(f"buffer_load_dwordx4 {vr(vY+8*v+4*q)}, v{vL16}, {sr(sWS)}, s{sN0+v-1} offen offset:{1024*q} sc1")
        for v in (1, 2, 3):
            A(f"s_waitcnt vmcnt({NQ*(3-v)})")
            for i in range(4 * NQ): A(f"v_add_f32 v{vY+i}, v{vY+i}, v{vY+8*v+i}")

    def exchange_tagged(self):
        A = self.A; NQ = self.NQ
        A(f"s_mov_b32 s{sPEND}, 7\ns_mov_b32 s{sSPIN}, 0\ns_nop {1 if NQ == 2 else 3}")
        for v in (2, 3, 1):
            for q in range(NQ):
                y = vY + 8 * v + 4 * q; g = vGS + 8 * (v - 1) + 4 * q
                A(f"v_cvt_pk_bf16_f32 v{g}, v{y}, v{y+1}\nv_cvt_pk_bf16_f32 v{g+2}, v{y+2}, v{y+3}")
                A(f"buffer_store_dwordx4 {vr(g)}, v{vL16}, {sr(sWS)}, s{sN0+v-1} offen offset:{1024*q} sc1")
        self.emit(self.stamp(8))
        if not self.prepoll:
            A(f"""
            s_branch L_g1_{NQ}
            L_g_{NQ}:
            s_add_u32 s{sSPIN}, s{sSPIN}, 1
            s_cmp_gt_u32 s{sSPIN}, {self.spinmax}
            s_cbranch_scc1 L_gd_{NQ}
            {f"s_sleep {self.sleep}" if self.sleep else ""}
            L_g1_{NQ}:
            s_mov_b32 s{sRDY}, s{sPEND}
            """)
        else: A(f"""
        L_g_{NQ}:
        buffer_load_dword v1, v{vF2P}, {sr(sWS)}, 0 offen sc1
        s_add_u32 s{sSPIN}, s{sSPIN}, 1
        s_waitcnt vmcnt(0)
        v_cmp_eq_u32 vcc, v{vTAG+1}, v1
        s_cmp_gt_u32 s{sSPIN}, {self.spinmax}
        s_cbranch_scc1 L_gd_{NQ}
        s_and_b32 s{sRDY}, vcc_lo, s{sPEND}
        s_cbranch_scc0 L_g_{NQ}
        """)
        for v in range(3):
            A(f"s_bitcmp1_b32 s{sRDY}, {v}\ns_cbranch_scc0 L_gl{v}_{NQ}")
            for q in range(NQ): A(f"buffer_load_dwordx4 {vr(vGR+8*v+4*q)}, v{vL16}, {sr(sWS)}, s{sRO[v]} offen offset:{1024*q} sc1")
            A(f"L_gl{v}_{NQ}:")
        A("s_waitcnt vmcnt(0)")
        for v in range(3):
            r = vGR + 8 * v
            A(f"s_bitcmp1_b32 s{sRDY}, {v}\ns_cbranch_scc0 L_gc{v}_{NQ}")
            A(f"v_xor_b32 v1, v{vTAG}, v{r+1}\nv_xor_b32 v2, v{vTAG+1}, v{r+3}")
            if NQ == 2: A(f"v_xor_b32 v3, v{vTAG}, v{r+5}\nv_xor_b32 v4, v{vTAG+1}, v{r+7}\nv_or3_b32 v1, v1, v3, v4")
            A(f"v_or_b32 v1, v1, v2\nv_cmp_ne_u32 vcc, 0, v1\ns_cbranch_vccnz L_gc{v}_{NQ}\ns_bitset0_b32 s{sPEND}, {v}")
            for k in range(2 * NQ):
                A(f"v_lshlrev_b32 v1, 16, v{r+2*k}\nv_and_b32 v2, 0xffff0000, v{r+2*k}\nv_add_f32 v{vY+2*k}, v{vY+2*k}, v1\nv_add_f32 v{vY+2*k+1}, v{vY+2*k+1}, v2")
            A(f"L_gc{v}_{NQ}:")
        A(f"""
        s_cmp_lg_u32 s{sPEND}, 0
        s_cbranch_scc1 L_g_{NQ}
        L_gd_{NQ}:
        """)
        self.emit(self.stamp(9))

    def tail_slow(self):
        A = self.A; NQ = self.NQ
        A(f"L_slow_{NQ}:\ns_waitcnt lgkmcnt(0)")
        for n in range(8): self.ostep(n, reads=n < 6, adv=False)
        A(f"buffer_load_dwordx2 {vr(vPOLL,2)}, v{vF1P}, {sr(sWS)}, 0 offen {self.fld}\ns_waitcnt vmcnt(1)")
        self.emit(self.PUBLISH1)
        A(f"s_waitcnt vmcnt(1)\nv_cmp_eq_u64 vcc, {vr(vTAG,2)}, {vr(vPOLL,2)}\ns_nop 0\ns_mov_b32 s{sRDY}, vcc_lo")
        self.emit(self.select(1, True))
        for k in range(4 * NQ): A(self.oload(1, k))
        for k in range(4): A(f"v_add_u32 v{vOR+k}, s{sSL+1}, v{vORB+k}")
        self.emit(self.woreads(8) + self.woreads(9))
        self.emit(self.select(2, True))
        for k in range(4 * NQ): A(self.oload(2, k))
        A(f"s_branch L_common_{NQ}")

    def capture(self, *fs):
        m = self.mark()
        for f in fs: f()
        r = self.A.l[m:]; del self.A.l[m:]
        return r
    def path(self, NQ):
        self.NQ = NQ; vm0 = list(self.vm)
        main = autowait(self.capture(self.qphase, self.attn_prologue, self.attn_loop, lambda: self.A(f"L_tail_{NQ}:"), self.tail))
        slow = autowait(self.capture(self.tail_slow))
        rare = self.capture(self.rescale, self.notag)
        self.vm = vm0
        ix = lambda lab: [l.strip() for l in main].index(lab)
        la, ll, le, lf, lc = ix(f"L_a_{NQ}:"), ix(f"L_last_{NQ}:"), ix(f"L_tail_{NQ}:"), ix(f"L_fast_{NQ}:"), ix(f"L_common_{NQ}:")
        errs = hazard.check(self.segs["pro"] + main[:ll] + main[la:], f"main{NQ}")
        errs += hazard.check(main[le:lf] + slow + main[lc:], f"slow{NQ}")
        out = []
        for l in main[la:lf]:
            out.append(l)
            mm = re.match(r"s_cbranch_vccnz L_rs_(\d+)_", l.strip())
            if mm: out += ["s_nop 0", "s_nop 0"] + self.segs[f"rs{'BA'[int(mm.group(1))%2]}{NQ}"] + ["s_nop 0", "s_nop 0"]
        errs += hazard.check(out, f"rare{NQ}")
        return errs, main[:ll] + [f"    s_branch L_last_{NQ}"], main[ll:] + slow, rare

    def build(self):
        self.polls = []
        m = self.mark(); self.prologue(); self.seg("pro", m)
        errs, hot, tail, rare = self.path(2)
        if self.one:
            e1, h1, t1, r1 = self.path(1)
            errs += e1; hot += ["L_one:"] + h1; tail += t1; rare += r1
        if self.stag is not None:
            b = self.capture(self.bfirst)
            i = hot.index("L_one:") if self.one else len(hot)
            hot[i:i] = b
            errs += [e for e in hazard.check(b, "bfirst") if "pending" not in e]
        self.A.l += hot
        self.loop_extras()
        self.A("L_hot_end:")
        self.A.l += tail
        self.poll_blocks()
        self.A("L_tail_end:")
        self.A.l += rare
        errs += [e for e in hazard.check(self.segs["x"], "extras") if f"{vTAG}" not in e and f"{vPOLL}" not in e]
        errs = [e for e in errs if f"buffer_load_dword v{vMX1}, v{vMX1}" not in e]
        for e in sorted(set(errs)): print("HAZARD", e, file=sys.stderr)
        assert self.nst <= 13
        return kernel_file([(KN, 256, 256, 10 * SLOT)], {KN: (self.A.text(), 512, 256, 102)}, NOTES)

if __name__ == "__main__":
    import argparse
    ap = argparse.ArgumentParser()
    ap.add_argument("-o", default="main.s"); ap.add_argument("--stamps", nargs="?", const="ws", default=None)
    ap.add_argument("--kv", default="nt"); ap.add_argument("--xw", default=""); ap.add_argument("--wo", default="")
    ap.add_argument("--dump", default=None); ap.add_argument("-T", type=float, default=8.0)
    ap.add_argument("--nopf", action="store_true"); ap.add_argument("--nodma", action="store_true")
    ap.add_argument("--sleep", type=int, default=0); ap.add_argument("--noone", action="store_true")
    ap.add_argument("--nowopf", action="store_true"); ap.add_argument("--dpos", type=int, default=1)
    ap.add_argument("--stag", type=int, default=None); ap.add_argument("--bpf", default="ok")
    ap.add_argument("--lim", type=lambda x: int(x, 16), default=0); ap.add_argument("--limw", type=int, default=8)
    ap.add_argument("--map", default="4x8"); ap.add_argument("--wosteps", default="4444")
    ap.add_argument("--warm", action="store_true"); ap.add_argument("--sleep1", type=int, default=0); ap.add_argument("--flags", default="so"); ap.add_argument("--fld", default="sc1"); ap.add_argument("--fst", default="sc1")
    ap.add_argument("--gran", action="store_true")
    ap.add_argument("--probe", type=int, default=1020)
    ap.add_argument("--apoll", action="store_true"); ap.add_argument("--prepoll", action="store_true"); ap.add_argument("--eps", type=float, default=0)
    ap.add_argument("--kvs", default="")
    ap.add_argument("--rot", default="24")
    ap.add_argument("--pollpos", type=int, default=1); ap.add_argument("--nfast", type=int, default=2)
    ap.add_argument("--loopw", type=int, default=12); ap.add_argument("--loopn", type=int, default=6)
    ap.add_argument("--split", action="store_true")
    ap.add_argument("--par", type=int, default=0)
    ap.add_argument("--tlb", action="store_true")
    ap.add_argument("--limp", type=int, default=0)
    ap.add_argument("--krot", default="")
    ap.add_argument("--kvtouch", action="store_true")
    a = ap.parse_args()
    g = Gen(stamps=a.stamps, kv=a.kv, xw=a.xw, wo=a.wo, dump=a.dump, T=a.T, pf=not a.nopf, nodma=a.nodma, sleep=a.sleep, one=not a.noone, wopf=not a.nowopf, dpos=a.dpos, stag=a.stag, bpf=a.bpf, lim=a.lim, limw=a.limw, map=a.map, wosteps=tuple(int(x) for x in a.wosteps), flags=a.flags, warm=a.warm, sleep1=a.sleep1, gran=a.gran, probe=a.probe, apoll=a.apoll, prepoll=a.prepoll, eps=a.eps, kvs=a.kvs, rot=a.rot, pollpos=a.pollpos, split=a.split, tlb=a.tlb, kvtouch=a.kvtouch, krot=a.krot, limp=a.limp, par=a.par, loopw=a.loopw, loopn=a.loopn, nfast=a.nfast, fld=a.fld, fst=a.fst)
    open(a.o, "w").write(g.build())
    print("stamps:", g.nst)
```
